```python
import torch

def _softmax(x, axis=-1):
    return torch.softmax(x, dim=axis)
def _gelu(x):
    return torch.nn.functional.gelu(x, approximate="tanh")
def _silu(x):
    return torch.nn.functional.silu(x)
def _sigmoid(x):
    return torch.sigmoid(x)
def _layernorm(x, axis=-1, eps=1e-5):
    m = x.mean(dim=axis, keepdim=True)
    v = x.var(dim=axis, keepdim=True, unbiased=False)
    return (x - m) / torch.sqrt(v + eps)
def _scatter_add(tgt, idx, src, axis=0):
    return tgt.clone().index_add_(axis, idx, src)
def _segment_sum(src, seg, n):
    out = torch.zeros((n,) + src.shape[1:], dtype=src.dtype)
    return out.index_add_(0, seg, src)
def _pad(x, pw):
    flat = tuple(v for pair in reversed(pw) for v in pair)
    return torch.nn.functional.pad(x, flat)

kernel_name = 'recurrent_scan__gqa_block_cached__glu_gated_swiglu__decode'

def setup_inputs():

    _w = (lambda a: (lambda t: t.to(torch.bfloat16) if t.is_floating_point() else t)(torch.as_tensor(a)))
    def _A_setup():
        B, Sq, D = 2, 1, 512
        Hq, Hkv, Sk, Dh = 32, 8, 32768, 128
        assert Hq % Hkv == 0, (Hq, Hkv)
        return {
            "x": _w((lambda *s: torch.randn(*s, dtype=torch.bfloat16) * 0.4)(B, Sq, D)),
            "k_cache": _w((lambda *s: torch.randn(*s, dtype=torch.bfloat16) * 1.6)(B, Hkv, Sk, Dh)),
            "v_cache": _w((lambda *s: torch.randn(*s, dtype=torch.bfloat16) * 1.6)(B, Hkv, Sk, Dh)),
            "wq": _w((lambda *s: torch.randn(*s, dtype=torch.bfloat16) * 1.6)(D, Hq * Dh) * (D ** -0.5)),
            "wo": _w((lambda *s: torch.randn(*s, dtype=torch.bfloat16) * 1.6)(Hq * Dh, D) * ((Hq * Dh) ** -0.5)),
        }
    _A_in = _A_setup()

    def _B_setup():
        B, S, D, F = 2, 1, 512, 1792
        return {
            "x": _w((lambda *s: torch.randn(*s, dtype=torch.bfloat16) * 0.4)(B, S, D)),
            "w1": _w((lambda *s: torch.randn(*s, dtype=torch.bfloat16) * 1.6)(D, F) * (2.0 / D) ** 0.5),
            "w3": _w((lambda *s: torch.randn(*s, dtype=torch.bfloat16) * 1.6)(D, F) * (2.0 / D) ** 0.5),
            "w2": _w((lambda *s: torch.randn(*s, dtype=torch.bfloat16) * 1.6)(F, D) * (2.0 / F) ** 0.5),
        }
    _B_in = _B_setup()

    return {
        "A_x": _A_in["x"],
        "A_k_cache": _A_in["k_cache"],
        "A_v_cache": _A_in["v_cache"],
        "A_wq": _A_in["wq"],
        "A_wo": _A_in["wo"],
        "B_x": _B_in["x"],
        "B_w1": _B_in["w1"],
        "B_w3": _B_in["w3"],
        "B_w2": _B_in["w2"],
    }

def reference(A_x, A_k_cache, A_v_cache, A_wq, A_wo, B_x, B_w1, B_w3, B_w2):
    def _A_ref(x, k_cache, v_cache, wq, wo):
        B, Sq, D = x.shape
        Hq, Dh = 32, 128
        Hkv = k_cache.shape[1]
        rep = Hq // Hkv
        q = (lambda x, *d: x.permute(*d))((x @ wq).reshape(B, Sq, Hq, Dh), 0, 2, 1, 3)
        k = (lambda x, n, axis: torch.repeat_interleave(x, n, dim=axis))(k_cache, rep, axis=1)
        v = (lambda x, n, axis: torch.repeat_interleave(x, n, dim=axis))(v_cache, rep, axis=1)
        scores = torch.einsum("bhqd,bhkd->bhqk", q, k) * (Dh ** -0.5)
        p = _softmax(scores, axis=-1)
        o = torch.einsum("bhqk,bhkd->bhqd", p, v)
        return (lambda x, *d: x.permute(*d))(o, 0, 2, 1, 3).reshape(B, Sq, Hq * Dh) @ wo

    def _B_ref(x, w1, w3, w2):
        gate = torch.einsum("bsd,df->bsf", x, w1)
        up = torch.einsum("bsd,df->bsf", x, w3)
        h = _silu(gate) * up
        out = torch.einsum("bsf,fd->bsd", h, w2)
        return out

    x = A_x
    xn = _layernorm(x, axis=-1)
    s = _A_ref(xn, A_k_cache, A_v_cache, A_wq, A_wo)
    g = _silu(_B_ref(xn, B_w1, B_w3, B_w2))
    return x + s * g
```

```python
import sys
NAME = "recurrent_scan__gqa_block_cached__glu_gated_swiglu__decode"
WS_Q=0; WS_H=0x4000; WS_O=0x10000; WS_ML=0x90000; WS_SP=0xA0000
WS_USED = 0x100000
LOG2E = 0x3fb8aa3b
SCALE = 0x3db504f3
EPS   = 0x3727c5ac

L = []
def e(s): L.append("    " + s)
def lab(s): L.append(s + ":")
def raw(s): L.append(s)

def srd(d, lo, hi, nrec):
    e(f"s_mov_b32 s{d}, s{lo}")
    e(f"s_mov_b32 s{d+1}, s{hi}")
    e(f"s_mov_b32 s{d+2}, {nrec}")
    e(f"s_mov_b32 s{d+3}, 0x00020000")

DPPM = "row_mask:0xf bank_mask:0xf"
def allreduce(op, regs, tmps):
    for ctrl in ("quad_perm:[1,0,3,2]", "quad_perm:[2,3,0,1]", "row_ror:4", "row_ror:8"):
        e("s_nop 1")
        for v in regs:
            e(f"v_{op}_f32_dpp v{v}, v{v}, v{v} {ctrl} {DPPM}")
    cross_rows(op, regs, tmps)

def cross_rows(op, regs, tmps):
    for sw in ("v_permlane16_swap_b32", "v_permlane32_swap_b32"):
        for v, t in zip(regs, tmps):
            e(f"v_mov_b32 v{t}, v{v}")
        e("s_nop 1")
        for v, t in zip(regs, tmps):
            e(f"{sw} v{v}, v{t}")
        e("s_nop 0")
        for v, t in zip(regs, tmps):
            e(f"v_{op}_f32 v{v}, v{v}, v{t}")

def row_reduce(op, regs):
    for ctrl in ("quad_perm:[1,0,3,2]", "quad_perm:[2,3,0,1]", "row_ror:4", "row_ror:8"):
        e("s_nop 1")
        for v in regs:
            e(f"v_{op}_f32_dpp v{v}, v{v}, v{v} {ctrl} {DPPM}")

def unpack(dlo, dhi, src):
    e(f"v_lshlrev_b32 v{dlo}, 16, v{src}")
    e(f"v_and_b32 v{dhi}, 0xffff0000, v{src}")

def round_pair(a, b, t):
    e(f"v_cvt_pk_bf16_f32 v{t}, v{a}, v{b}")
    unpack(a, b, t)

def kernel_begin(name):
    raw(f".globl {name}")
    raw(".p2align 8")
    raw(f".type {name},@function")
    lab(name)

def kdesc(name, vgpr, sgpr):
    raw('.section .rodata,"a"')
    raw(".p2align 6")
    raw(f".amdhsa_kernel {name}")
    raw(f"  .amdhsa_next_free_vgpr {vgpr}")
    raw(f"  .amdhsa_next_free_sgpr {sgpr}")
    raw(f"  .amdhsa_accum_offset {(vgpr+3)//4*4}")
    raw("  .amdhsa_group_segment_fixed_size 0")
    raw("  .amdhsa_kernarg_size 96")
    raw("  .amdhsa_user_sgpr_count 2")
    raw("  .amdhsa_user_sgpr_kernarg_segment_ptr 1")
    raw("  .amdhsa_system_sgpr_workgroup_id_x 1")
    raw("  .amdhsa_float_denorm_mode_32 3")
    raw(".end_amdhsa_kernel")
    raw(".text")

def layernorm(xa, o0, t0):
    f = o0
    for b in range(2):
        for j in range(4):
            unpack(f + b*8 + 2*j, f + b*8 + 2*j + 1, xa + b*4 + j)
    s0, s1, u0, u1 = t0, t0+1, t0+2, t0+3
    for b, s in ((0, s0), (1, s1)):
        e(f"v_add_f32 v{s}, v{f+b*8}, v{f+b*8+1}")
        for j in range(2, 8):
            e(f"v_add_f32 v{s}, v{s}, v{f+b*8+j}")
    allreduce("add", [s0, s1], [u0, u1])
    e(f"v_mul_f32 v{s0}, 0x3b000000, v{s0}")
    e(f"v_mul_f32 v{s1}, 0x3b000000, v{s1}")
    q0, q1, d = t0+4, t0+5, t0+6
    for b, s, q in ((0, s0, q0), (1, s1, q1)):
        e(f"v_sub_f32 v{d}, v{f+b*8}, v{s}")
        e(f"v_mul_f32 v{q}, v{d}, v{d}")
        for j in range(1, 8):
            e(f"v_sub_f32 v{d}, v{f+b*8+j}, v{s}")
            e(f"v_fmac_f32 v{q}, v{d}, v{d}")
    allreduce("add", [q0, q1], [u0, u1])
    e(f"v_mul_f32 v{q0}, 0x3b000000, v{q0}")
    e(f"v_mul_f32 v{q1}, 0x3b000000, v{q1}")
    round_pair(s0, s1, d)
    round_pair(q0, q1, d)
    e(f"v_add_f32 v{q0}, {EPS:#x}, v{q0}")
    e(f"v_add_f32 v{q1}, {EPS:#x}, v{q1}")
    round_pair(q0, q1, d)
    e(f"v_sqrt_f32 v{q0}, v{q0}")
    e(f"v_sqrt_f32 v{q1}, v{q1}")
    e("s_nop 0")
    round_pair(q0, q1, d)
    r0, r1 = t0+7, t0+8
    e(f"v_rcp_f32 v{r0}, v{q0}")
    e(f"v_rcp_f32 v{r1}, v{q1}")
    e("s_nop 0")
    ta, tb, tc, td = t0+9, t0+10, t0+11, t0+12
    for b, s, q, r in ((0, s0, q0, r0), (1, s1, q1, r1)):
        for j in range(0, 8, 2):
            a0, a1 = f+b*8+j, f+b*8+j+1
            e(f"v_sub_f32 v{a0}, v{a0}, v{s}")
            e(f"v_sub_f32 v{a1}, v{a1}, v{s}")
            round_pair(a0, a1, d)
            e(f"v_mul_f32 v{ta}, v{a0}, v{r}")
            e(f"v_mul_f32 v{tb}, v{a1}, v{r}")
            e(f"v_fma_f32 v{tc}, -v{ta}, v{q}, v{a0}")
            e(f"v_fma_f32 v{td}, -v{tb}, v{q}, v{a1}")
            e(f"v_fmac_f32 v{ta}, v{tc}, v{r}")
            e(f"v_fmac_f32 v{tb}, v{td}, v{r}")
            e(f"v_cvt_pk_bf16_f32 v{d}, v{ta}, v{tb}")
            e(f"v_and_b32 v{a0}, 0xffff, v{d}")
            e(f"v_lshrrev_b32 v{a1}, 16, v{d}")

def silu(dst, src, t1, t2):
    e(f"v_mul_f32 v{t1}, 0xbfb8aa3b, v{src}")
    e(f"v_exp_f32 v{t1}, v{t1}")
    e("s_nop 0")
    e(f"v_add_f32 v{t1}, 1.0, v{t1}")
    e(f"v_rcp_f32 v{t2}, v{t1}")
    e("s_nop 0")
    e(f"v_mul_f32 v{dst}, v{src}, v{t2}")

def k1():
    kernel_begin("proj_kernel")
    e("s_cmp_ge_u32 s2, 184")
    e("s_cbranch_scc1 K1_done")
    e("s_load_dwordx2 s[4:5], s[0:1], 0")
    e("s_load_dwordx2 s[6:7], s[0:1], 24")
    e("s_load_dwordx4 s[8:11], s[0:1], 48")
    e("s_load_dwordx2 s[12:13], s[0:1], 88")
    e("v_and_b32 v1, 63, v0")
    e("v_lshlrev_b32 v2, 4, v1")
    e("v_lshrrev_b32 v3, 2, v0")
    e("v_and_b32 v4, 3, v0")
    e("s_waitcnt lgkmcnt(0)")
    srd(16, 4, 5, 2048)
    srd(28, 12, 13, WS_USED)
    e("s_cmp_lt_u32 s2, 128")
    e("s_cselect_b32 s20, s6, s8")
    e("s_cselect_b32 s21, s7, s9")
    e(f"s_mov_b32 s33, {512*4096*2}")
    e(f"s_mov_b32 s34, {512*1792*2}")
    e("s_cselect_b32 s22, s33, s34")
    e("s_mov_b32 s23, 0x00020000")
    e("s_mov_b32 s24, s10")
    e("s_mov_b32 s25, s11")
    e("s_cselect_b32 s26, 0, s34")
    e("s_mov_b32 s27, 0x00020000")
    e("s_mov_b32 s33, 8192")
    e("s_mov_b32 s34, 3584")
    e("s_cselect_b32 s32, s33, s34")
    e("s_sub_u32 s36, s2, 128")
    e("s_cmp_lt_u32 s2, 128")
    e("s_cselect_b32 s35, s2, s36")
    e("s_lshl_b32 s36, s35, 6")
    for i in range(8):
        e(f"s_mul_i32 s{40+i}, s32, {i}")
    e("buffer_load_dwordx4 v[8:11], v2, s[16:19], 0 offen")
    e("buffer_load_dwordx4 v[12:15], v2, s[16:19], 0 offen offset:1024")
    e("v_lshlrev_b32 v5, 3, v3")
    e("v_mul_lo_u32 v5, v5, s32")
    e("v_lshl_add_u32 v5, v4, 4, v5")
    e("v_add_u32 v5, s36, v5")
    for i in range(8):
        e(f"buffer_load_dwordx4 v[{16+4*i}:{19+4*i}], v5, s[20:23], s{40+i} offen")
    for i in range(8):
        e(f"buffer_load_dwordx4 v[{48+4*i}:{51+4*i}], v5, s[24:27], s{40+i} offen")
    e("s_waitcnt vmcnt(16)")
    layernorm(8, 80, 96)
    e("v_lshlrev_b32 v6, 5, v1")
    e("ds_write_b128 v6, v[80:83]")
    e("ds_write_b128 v6, v[84:87] offset:16")
    e("ds_write_b128 v6, v[88:91] offset:2048")
    e("ds_write_b128 v6, v[92:95] offset:2064")
    e("v_lshlrev_b32 v7, 5, v3")
    e("s_waitcnt lgkmcnt(0)")
    e("ds_read_b128 v[80:83], v7")
    e("ds_read_b128 v[84:87], v7 offset:16")
    e("ds_read_b128 v[88:91], v7 offset:2048")
    e("ds_read_b128 v[92:95], v7 offset:2064")
    e("s_waitcnt lgkmcnt(0)")
    for i in range(16):
        e(f"v_lshlrev_b32 v{96+i}, 16, v{80+i}")
    e("v_lshlrev_b32 v6, 6, v0")
    e("v_add_u32 v6, 4096, v6")
    e("v_bfe_u32 v112, v0, 3, 2")
    e("v_lshlrev_b32 v112, 6, v112")
    e("v_bfe_u32 v113, v0, 5, 1")
    e("v_lshl_add_u32 v112, v113, 5, v112")
    e("v_and_b32 v113, 7, v0")
    e("v_lshl_add_u32 v112, v113, 2, v112")
    e("v_lshrrev_b32 v113, 6, v0")
    e("v_lshl_add_u32 v112, v113, 12, v112")
    e("v_add_u32 v112, 4096, v112")
    e("v_lshlrev_b32 v114, 2, v0")
    e("v_add_u32 v114, 20480, v114")
    e("v_lshlrev_b32 v115, 2, v1")
    e("v_add_u32 v115, 20480, v115")

    def gemv(tile, res, waitn):
        acc = 120
        for i in range(16):
            e(f"v_mov_b32 v{acc+i}, 0")
        e(f"s_waitcnt vmcnt({waitn})")
        for i in range(8):
            for j in range(4):
                w = tile + 4*i + j
                for b in range(2):
                    e(f"v_dot2_f32_bf16 v{acc+b*8+2*j}, v{w}, v{80+b*8+i}, v{acc+b*8+2*j}")
                    e(f"v_dot2_f32_bf16 v{acc+b*8+2*j+1}, v{w}, v{96+b*8+i}, v{acc+b*8+2*j+1}")
        e("s_nop 3")
        for k in range(4):
            e(f"ds_write_b128 v6, v[{acc+4*k}:{acc+4*k+3}] offset:{16*k}")
        e("s_waitcnt lgkmcnt(0)")
        e("s_barrier")
        for k in range(16):
            e(f"ds_read_b32 v{136+k}, v112 offset:{k*256}")
            if k == 7: e("s_waitcnt lgkmcnt(4)")
        e("s_waitcnt lgkmcnt(0)")
        for k in range(1, 16):
            e(f"v_add_f32 v136, v136, v{136+k}")
        e("ds_write_b32 v114, v136")
        e("s_waitcnt lgkmcnt(0)")
        e("s_barrier")
        for k in range(4):
            e(f"ds_read_b32 v{136+k}, v115 offset:{k*256}")
        e("s_waitcnt lgkmcnt(0)")
        e("v_add_f32 v136, v136, v137")
        e("v_add_f32 v138, v138, v139")
        e(f"v_add_f32 v{res}, v136, v138")
    gemv(16, 152, 8)
    e("v_bfe_u32 v116, v0, 5, 1")
    e("v_and_b32 v117, 31, v0")
    e("s_cmp_lt_u32 s2, 128")
    e("s_cbranch_scc0 K1_ffn")
    e("v_lshlrev_b32 v118, 13, v116")
    e("v_lshl_add_u32 v118, v117, 1, v118")
    e("v_add_u32 v118, s36, v118")
    e("v_cvt_pk_bf16_f32 v152, v152, v152")
    e("v_cmp_gt_u32 vcc, 64, v0")
    e("s_and_saveexec_b64 s[50:51], vcc")
    e("s_cbranch_execz K1_done")
    e(f"buffer_store_short v152, v118, s[28:31], 0 offen offset:{WS_Q}")
    e("s_branch K1_done")
    lab("K1_ffn")
    e("s_barrier")
    gemv(48, 153, 0)
    round_pair(152, 153, 154)
    silu(155, 152, 156, 157)
    e("v_cvt_pk_bf16_f32 v154, v155, v155")
    e("v_lshlrev_b32 v155, 16, v154")
    e("v_mul_f32 v155, v155, v153")
    e("v_cvt_pk_bf16_f32 v155, v155, v155")
    e("v_mul_u32_u24 v118, 3584, v116")
    e("v_lshl_add_u32 v118, v117, 1, v118")
    e("v_add_u32 v118, s36, v118")
    e(f"v_add_u32 v118, {WS_H}, v118")
    e("v_cmp_gt_u32 vcc, 64, v0")
    e("s_and_saveexec_b64 s[50:51], vcc")
    e("s_cbranch_execz K1_done")
    e("buffer_store_short v155, v118, s[28:31], 0 offen")
    lab("K1_done")
    e("s_endpgm")
    kdesc("proj_kernel", 160, 56)

NT = " nt"
def k2():
    kernel_begin("attn_kernel")
    e("s_cmp_ge_u32 s2, 256")
    e("s_cbranch_scc1 K2_done")
    e("s_load_dwordx4 s[4:7], s[0:1], 8")
    e("s_load_dwordx2 s[8:9], s[0:1], 88")
    e("v_lshrrev_b32 v1, 6, v0")
    e("s_nop 0")
    e("v_readfirstlane_b32 s24, v1")
    e("v_and_b32 v1, 63, v0")
    e("s_and_b32 s25, s2, 7")
    e("s_bfe_u32 s26, s2, 0x10003")
    e("s_lshr_b32 s27, s2, 4")
    e("s_lshl_b32 s28, s26, 3")
    e("s_add_u32 s28, s28, s25")
    e("s_lshl_b32 s28, s28, 23")
    e("s_lshl_b32 s29, s27, 19")
    e("s_add_u32 s28, s28, s29")
    e("s_lshl_b32 s29, s24, 17")
    e("s_add_u32 s28, s28, s29")
    e("s_lshl_b32 s30, s24, 15")
    e("s_waitcnt lgkmcnt(0)")
    e("s_add_u32 s12, s4, s28")
    e("s_addc_u32 s13, s5, 0")
    e("s_mov_b32 s14, 131072")
    e("s_mov_b32 s15, 0x00020000")
    e("s_add_u32 s16, s6, s28")
    e("s_addc_u32 s17, s7, 0")
    e("s_mov_b32 s18, 131072")
    e("s_mov_b32 s19, 0x00020000")
    srd(20, 8, 9, WS_USED)
    e("v_and_b32 v142, 15, v1")
    e("v_lshrrev_b32 v143, 4, v1")
    for i in range(16):
        e(f"v_mov_b32 v{16+i}, 0")
    e("s_lshl_b32 s31, s26, 13")
    e("s_lshl_b32 s32, s25, 10")
    e("s_add_u32 s31, s31, s32")
    e("v_lshlrev_b32 v144, 8, v142")
    e("v_lshl_add_u32 v144, v143, 4, v144")
    e("v_cmp_gt_u32 vcc, 4, v142")
    e("s_and_saveexec_b64 s[34:35], vcc")
    for s in range(4):
        e(f"buffer_load_dwordx4 v[{16+4*s}:{19+4*s}], v144, s[20:23], s31 offen offset:{WS_Q + s*64}")
    e("s_mov_b64 exec, s[34:35]")
    e("v_lshlrev_b32 v145, 1, v143")
    e("v_xor_b32 v145, v142, v145")
    e("v_lshlrev_b32 v145, 4, v145")
    e("v_lshl_add_u32 v2, v143, 8, v145")
    e("v_xor_b32 v3, 0x80, v2")
    def dma(srdb, soff_s, ldsoff, extra):
        for half in range(2):
            e(f"s_add_u32 m0, s30, {ldsoff + half*4096}")
            if half:
                e(f"s_add_u32 s{extra}, s{soff_s}, 4096")
            else:
                e("s_nop 0")
            so = extra if half else soff_s
            for n in range(4):
                v = 3 if (n & 1) else 2
                e(f"buffer_load_dwordx4 v{v}, s[{srdb}:{srdb+3}], s{so} offen offset:{n*1024}{NT} lds")
    e("s_mov_b32 s36, 0")
    dma(12, 36, 0, 37)
    dma(16, 36, 8192, 37)
    e("s_mov_b32 s36, 8192")
    dma(12, 36, 16384, 37)
    dma(16, 36, 24576, 37)
    e("s_mov_b32 s36, 16384")
    e("v_and_b32 v145, 7, v142")
    e("v_lshlrev_b32 v145, 1, v145")
    e("v_xor_b32 v145, v143, v145")
    e("v_lshlrev_b32 v145, 4, v145")
    e("v_lshl_add_u32 v145, v142, 8, v145")
    e("v_add_u32 v4, s30, v145")
    for s in range(1, 4):
        e(f"v_xor_b32 v{4+s}, {s*64}, v4")
    e("v_bfe_u32 v145, v1, 2, 2")
    e("v_lshl_add_u32 v145, v143, 2, v145")
    e("v_and_b32 v146, 7, v145")
    e("v_lshlrev_b32 v146, 1, v146")
    e("v_bfe_u32 v147, v1, 1, 1")
    e("v_xor_b32 v146, v146, v147")
    e("v_lshlrev_b32 v146, 4, v146")
    e("v_lshl_add_u32 v146, v145, 8, v146")
    e("v_and_b32 v147, 1, v1")
    e("v_lshl_add_u32 v146, v147, 3, v146")
    e("v_add_u32 v146, 8192, v146")
    e("v_add_u32 v8, s30, v146")
    for db in range(1, 8):
        e(f"v_xor_b32 v{8+db}, {db*32}, v8")
    for i in range(32):
        e(f"v_mov_b32 v{96+i}, 0")
    e("v_mov_b32 v140, 0xff800000")
    e("v_mov_b32 v141, 0")
    e(f"s_mov_b32 s40, {LOG2E:#x}")
    e(f"s_mov_b32 s41, {SCALE:#x}")
    e("s_mov_b32 s38, 0")
    lab("K2_loop")
    for p in range(2):
        e("s_waitcnt vmcnt(24)")
        for t in range(2):
            for s in range(4):
                r = 32 + (t*4+s)*4
                e(f"ds_read_b128 v[{r}:{r+3}], v{4+s} offset:{p*16384 + t*4096}")
        e("s_waitcnt lgkmcnt(0)")
        dma(12, 36, p*16384, 37)
        for s in range(4):
            for t in range(2):
                r = 32 + (t*4+s)*4
                d = 128 + 4*t
                c = "0" if s == 0 else f"v[{d}:{d+3}]"
                e(f"v_mfma_f32_16x16x32_bf16 v[{d}:{d+3}], v[{r}:{r+3}], v[{16+4*s}:{19+4*s}], {c}")
        e("s_nop 7")
        e("s_nop 1")
        S = list(range(128, 136))
        for j in range(0, 8, 2):
            round_pair(S[j], S[j+1], 148 + j//2)
        for j in range(8):
            e(f"v_mul_f32 v{S[j]}, s41, v{S[j]}")
        for j in range(0, 8, 2):
            round_pair(S[j], S[j+1], 148 + j//2)
        e("v_max3_f32 v144, v128, v129, v130")
        e("v_max3_f32 v145, v131, v132, v133")
        e("v_max3_f32 v144, v144, v134, v135")
        e("v_max_f32 v144, v144, v145")
        cross_rows("max", [144], [145])
        e("v_max_f32 v144, v144, v140")
        e("v_sub_f32 v145, v140, v144")
        e("v_mul_f32 v145, s40, v145")
        e("v_exp_f32 v145, v145")
        e("v_mov_b32 v140, v144")
        e("v_mul_f32 v146, s40, v144")
        for j in range(8):
            e(f"v_fma_f32 v{S[j]}, v{S[j]}, s40, -v146")
        for j in range(8):
            e(f"v_exp_f32 v{S[j]}, v{S[j]}")
        e("v_mul_f32 v141, v141, v145")
        for j in range(8):
            e(f"v_add_f32 v141, v141, v{S[j]}")
        for j in range(4):
            e(f"v_cvt_pk_bf16_f32 v{136+j}, v{S[2*j]}, v{S[2*j+1]}")
        for i in range(32):
            e(f"v_mul_f32 v{96+i}, v{96+i}, v145")
        e("s_waitcnt vmcnt(24)")
        for db in range(8):
            for t in range(2):
                r = 64 + db*4 + t*2
                e(f"ds_read_b64_tr_b16 v[{r}:{r+1}], v{8+db} offset:{p*16384 + t*4096}")
            if db == 3:
                e("s_waitcnt lgkmcnt(4)")
        e("s_waitcnt lgkmcnt(0)")
        dma(16, 36, p*16384 + 8192, 37)
        e("s_add_u32 s36, s36, 8192")
        for db in range(8):
            e(f"v_mfma_f32_16x16x32_bf16 v[{96+4*db}:{99+4*db}], v[{64+4*db}:{67+4*db}], v[136:139], v[{96+4*db}:{99+4*db}]")
        e("s_nop 7")
        e("s_nop 1")
    e("s_add_u32 s38, s38, 1")
    e("s_cmp_lt_u32 s38, 8")
    e("s_cbranch_scc1 K2_loop")
    cross_rows("add", [141], [145])
    e("s_waitcnt vmcnt(0)")
    e("v_lshlrev_b32 v144, 9, v142")
    e("v_lshl_add_u32 v144, v143, 4, v144")
    e("v_add_u32 v144, s30, v144")
    e("v_lshlrev_b32 v145, 3, v142")
    e("v_add_u32 v145, s30, v145")
    e("v_cmp_gt_u32 vcc, 4, v142")
    e("s_and_saveexec_b64 s[34:35], vcc")
    for db in range(8):
        e(f"ds_write_b128 v144, v[{96+4*db}:{99+4*db}] offset:{db*64}")
    e("ds_write_b64 v145, v[140:141] offset:2048")
    e("s_mov_b64 exec, s[34:35]")
    e("s_waitcnt lgkmcnt(0)")
    e("s_barrier")
    e("s_lshl_b32 s42, s24, 9")
    e("v_lshlrev_b32 v144, 3, v1")
    e("v_add_u32 v144, s42, v144")
    e("s_lshl_b32 s43, s24, 3")
    e("v_mov_b32 v145, s43")
    e("v_add_u32 v146, 0x10000, v144")
    e("v_add_u32 v147, 0x10000, v145")
    for w in range(4):
        e(f"ds_read_b64 v[{32+2*w}:{33+2*w}], v{144 + 2*(w>>1)} offset:{(w&1)*32768}")
        e(f"ds_read_b64 v[{40+2*w}:{41+2*w}], v{145 + 2*(w>>1)} offset:{(w&1)*32768 + 2048}")
    e("s_waitcnt lgkmcnt(0)")
    e("v_max3_f32 v48, v40, v42, v44")
    e("v_max_f32 v48, v48, v46")
    for w in range(4):
        e(f"v_sub_f32 v{50+w}, v{40+2*w}, v48")
        e(f"v_mul_f32 v{50+w}, s40, v{50+w}")
        e(f"v_exp_f32 v{50+w}, v{50+w}")
    e("s_nop 0")
    e("v_mul_f32 v49, v41, v50")
    e("v_mul_f32 v54, v32, v50")
    e("v_mul_f32 v55, v33, v50")
    for w in range(1, 4):
        e(f"v_fmac_f32 v49, v{41+2*w}, v{50+w}")
        e(f"v_fmac_f32 v54, v{32+2*w}, v{50+w}")
        e(f"v_fmac_f32 v55, v{33+2*w}, v{50+w}")
    e("s_lshl_b32 s44, s26, 5")
    e("s_lshl_b32 s45, s25, 2")
    e("s_add_u32 s44, s44, s45")
    e("s_add_u32 s44, s44, s24")
    e("s_lshl_b32 s44, s44, 4")
    e("s_add_u32 s44, s44, s27")
    e("s_lshl_b32 s45, s44, 9")
    e(f"s_add_u32 s45, s45, {WS_O}")
    e("s_lshl_b32 s46, s44, 3")
    e(f"s_add_u32 s46, s46, {WS_ML}")
    e("v_lshlrev_b32 v144, 3, v1")
    e("buffer_store_dwordx2 v[54:55], v144, s[20:23], s45 offen")
    e("v_cmp_eq_u32 vcc, 0, v1")
    e("s_and_saveexec_b64 s[34:35], vcc")
    e("buffer_store_dwordx2 v[48:49], v144, s[20:23], s46 offen")
    lab("K2_done")
    e("s_endpgm")
    kdesc("attn_kernel", 160, 56)

def k3():
    kernel_begin("final_kernel")
    e("s_cmp_ge_u32 s2, 256")
    e("s_cbranch_scc1 K3_done")
    e("s_load_dwordx2 s[4:5], s[0:1], 0")
    e("s_load_dwordx2 s[6:7], s[0:1], 32")
    e("s_load_dwordx4 s[8:11], s[0:1], 64")
    e("s_load_dwordx4 s[12:15], s[0:1], 80")
    e("v_lshrrev_b32 v1, 6, v0")
    e("s_nop 0")
    e("v_readfirstlane_b32 s48, v1")
    e("v_and_b32 v1, 63, v0")
    e("s_and_b32 s49, s2, 31")
    e("s_lshr_b32 s50, s2, 5")
    e("s_lshr_b32 s51, s48, 1")
    e("s_waitcnt lgkmcnt(0)")
    srd(16, 4, 5, 2048)
    srd(20, 6, 7, 4096*512*2)
    srd(24, 8, 9, 1792*512*2)
    srd(28, 10, 11, 2048)
    srd(32, 12, 13, 256)
    srd(36, 14, 15, WS_USED)
    e(f"s_mov_b32 s40, {LOG2E:#x}")
    e("s_lshl_b32 s52, s51, 5")
    e("s_add_u32 s52, s52, s49")
    e("s_lshl_b32 s53, s52, 13")
    e(f"s_add_u32 s53, s53, {WS_O}")
    e("s_lshl_b32 s54, s52, 7")
    e(f"s_add_u32 s54, s54, {WS_ML}")
    e("v_and_b32 v2, 15, v1")
    e("v_lshlrev_b32 v2, 3, v2")
    e("buffer_load_dwordx2 v[4:5], v2, s[36:39], s54 offen")
    e("v_and_b32 v3, 127, v0")
    e("v_lshlrev_b32 v3, 2, v3")
    e("s_add_u32 s55, s53, 4096")
    for sp in range(16):
        so = "s53" if sp < 8 else "s55"
        e(f"buffer_load_dword v{8+sp}, v3, s[36:39], {so} offen offset:{(sp&7)*512}")
    e("v_lshrrev_b32 v6, 3, v0")
    e("v_and_b32 v7, 7, v0")
    e("v_lshlrev_b32 v24, 12, v6")
    e("v_lshl_add_u32 v24, v7, 4, v24")
    e("s_lshl_b32 s56, s49, 17")
    e("s_lshl_b32 s57, s50, 7")
    e("s_add_u32 s56, s56, s57")
    for i in range(4):
        e(f"buffer_load_dwordx4 v[{32+4*i}:{35+4*i}], v24, s[20:23], s56 offen offset:{i*1024}")
    e("v_lshlrev_b32 v25, 11, v6")
    e("v_lshl_add_u32 v25, v7, 4, v25")
    e("s_lshl_b32 s58, s49, 16")
    e("s_add_u32 s58, s58, s57")
    for i in range(2):
        e(f"buffer_load_dwordx4 v[{48+4*i}:{51+4*i}], v25, s[24:27], s58 offen offset:{i*1024}")
    e("v_mov_b32 v56, 0")
    e("v_mov_b32 v57, 0")
    e("v_lshlrev_b32 v26, 2, v6")
    e("s_lshl_b32 s59, s49, 7")
    e(f"s_add_u32 s59, s59, {WS_H}")
    e("s_cmp_ge_u32 s49, 28")
    e("s_cbranch_scc1 K3_noh")
    e("buffer_load_dword v56, v26, s[36:39], s59 offen")
    e("buffer_load_dword v57, v26, s[36:39], s59 offen offset:3584")
    lab("K3_noh")
    e("s_waitcnt vmcnt(0)")
    e("v_mov_b32 v28, v4")
    row_reduce("max", [28])
    e("v_sub_f32 v29, v4, v28")
    e("v_mul_f32 v29, s40, v29")
    e("v_exp_f32 v29, v29")
    e("s_nop 0")
    e("v_mul_f32 v30, v29, v5")
    row_reduce("add", [30])
    e("v_rcp_f32 v31, v30")
    e("s_nop 1")
    for sp in range(16):
        e(f"v_readlane_b32 s{60+sp}, v29, {sp}")
    e("s_nop 1")
    e("v_mul_f32 v27, s60, v8")
    for sp in range(1, 16):
        e(f"v_fmac_f32 v27, s{60+sp}, v{8+sp}")
    e("v_mul_f32 v8, v27, v31")
    e("v_fma_f32 v9, -v8, v30, v27")
    e("v_fmac_f32 v8, v9, v31")
    e("v_cvt_pk_bf16_f32 v8, v8, v8")
    e("v_and_b32 v8, 0xffff, v8")
    e("v_lshlrev_b32 v9, 2, v0")
    e("ds_write_b32 v9, v8")
    e("s_waitcnt lgkmcnt(0)")
    e("s_barrier")
    e("v_lshlrev_b32 v9, 4, v6")
    e("ds_read_b128 v[8:11], v9")
    e("ds_read_b128 v[12:15], v9 offset:512")
    for i in range(32):
        e(f"v_mov_b32 v{64+i}, 0")
    for b in range(2):
        e(f"v_and_b32 v{100+b*4}, 0xffff, v{56+b}")
        e(f"v_lshlrev_b32 v{101+b*4}, 16, v{56+b}")
        e(f"v_lshrrev_b32 v{102+b*4}, 16, v{56+b}")
        e(f"v_and_b32 v{103+b*4}, 0xffff0000, v{56+b}")
    e("s_waitcnt lgkmcnt(0)")
    for i in range(8):
        e(f"v_lshlrev_b32 v{16+i}, 16, v{8+i}")
    for i in range(4):
        for j in range(4):
            w = 32 + 4*i + j
            for b in range(2):
                e(f"v_dot2_f32_bf16 v{64+b*8+2*j}, v{w}, v{8+b*4+i}, v{64+b*8+2*j}")
                e(f"v_dot2_f32_bf16 v{64+b*8+2*j+1}, v{w}, v{16+b*4+i}, v{64+b*8+2*j+1}")
    for i in range(2):
        for j in range(4):
            w = 48 + 4*i + j
            for b in range(2):
                e(f"v_dot2_f32_bf16 v{80+b*8+2*j}, v{w}, v{100+b*4+2*i}, v{80+b*8+2*j}")
                e(f"v_dot2_f32_bf16 v{80+b*8+2*j+1}, v{w}, v{101+b*4+2*i}, v{80+b*8+2*j+1}")
    e("s_nop 3")
    e("v_lshlrev_b32 v9, 7, v0")
    for k in range(8):
        e(f"ds_write_b128 v9, v[{64+4*k}:{67+4*k}] offset:{1024 + 16*k}")
    e("s_waitcnt lgkmcnt(0)")
    e("s_barrier")
    e("v_bfe_u32 v10, v0, 3, 3")
    e("v_lshlrev_b32 v10, 7, v10")
    e("v_lshrrev_b32 v11, 6, v0")
    e("v_lshl_add_u32 v10, v11, 5, v10")
    e("v_and_b32 v11, 7, v0")
    e("v_lshl_add_u32 v10, v11, 2, v10")
    for k in range(32):
        e(f"ds_read_b32 v{64+k}, v10 offset:{1024 + k*1024}")
        if k % 8 == 7 and k < 31: e("s_waitcnt lgkmcnt(4)")
    e("s_waitcnt lgkmcnt(0)")
    for st in (16, 8, 4, 2, 1):
        for k in range(st):
            e(f"v_add_f32 v{64+k}, v{64+k}, v{64+k+st}")
    e("s_lshl_b32 s76, s50, 15")
    e(f"s_add_u32 s76, s76, {WS_SP}")
    e("s_lshl_b32 s77, s49, 10")
    e("s_add_u32 s77, s77, s76")
    e("v_lshlrev_b32 v9, 2, v0")
    e("buffer_store_dword v64, v9, s[36:39], s77 offen sc1")
    e("s_waitcnt vmcnt(0)")
    e("s_barrier")
    e("v_cmp_eq_u32 vcc, 0, v0")
    e("s_and_saveexec_b64 s[78:79], vcc")
    e("s_cbranch_execz K3_skipatom")
    e("v_mov_b32 v12, 1")
    e("s_lshl_b32 s80, s50, 2")
    e("v_mov_b32 v13, s80")
    e("buffer_atomic_add v12, v13, s[32:35], 0 offen sc0")
    e("s_waitcnt vmcnt(0)")
    e("v_mov_b32 v13, 0")
    e("ds_write_b32 v13, v12")
    e("s_waitcnt lgkmcnt(0)")
    lab("K3_skipatom")
    e("s_mov_b64 exec, s[78:79]")
    e("s_barrier")
    e("v_mov_b32 v13, 0")
    e("ds_read_b32 v12, v13")
    e("s_waitcnt lgkmcnt(0)")
    e("v_readfirstlane_b32 s81, v12")
    e("s_nop 3")
    e("s_cmp_lg_u32 s81, 31")
    e("s_cbranch_scc1 K3_done")
    for hh in range(32):
        if hh % 4 == 0:
            e(f"s_add_u32 s82, s76, {hh*1024}")
        e(f"buffer_load_dword v{64+hh}, v9, s[36:39], s82 offen offset:{(hh%4)*1024} sc1")
    e("v_bfe_u32 v14, v0, 6, 1")
    e("v_lshlrev_b32 v14, 10, v14")
    e("v_lshl_add_u32 v14, v1, 1, v14")
    e("v_add_u32 v14, s57, v14")
    e("buffer_load_ushort v15, v14, s[16:19], 0 offen")
    e("s_waitcnt vmcnt(0)")
    for st in (16, 8, 4, 2, 1):
        for k in range(st):
            e(f"v_add_f32 v{64+k}, v{64+k}, v{64+k+st}")
    e("s_barrier")
    e("ds_write_b32 v9, v64 offset:1024")
    e("s_waitcnt lgkmcnt(0)")
    e("s_barrier")
    e("ds_read_b32 v65, v9 offset:1536")
    e("s_waitcnt lgkmcnt(0)")
    round_pair(64, 65, 66)
    silu(67, 65, 68, 69)
    e("v_cvt_pk_bf16_f32 v67, v67, v67")
    e("v_lshlrev_b32 v67, 16, v67")
    e("v_mul_f32 v67, v64, v67")
    e("v_cvt_pk_bf16_f32 v67, v67, v67")
    e("v_lshlrev_b32 v67, 16, v67")
    e("v_lshlrev_b32 v15, 16, v15")
    e("v_add_f32 v67, v15, v67")
    e("v_cvt_pk_bf16_f32 v67, v67, v67")
    e("v_cmp_gt_u32 vcc, 128, v0")
    e("s_and_saveexec_b64 s[78:79], vcc")
    e("s_cbranch_execz K3_done")
    e("buffer_store_short v67, v14, s[28:31], 0 offen")
    lab("K3_done")
    e("s_endpgm")
    kdesc("final_kernel", 112, 96)

hdr = open(f"cdna_kernels/{NAME}.s.ref").read().split("\n")
head = [l for l in hdr if l.startswith(";") and "@launch" not in l and "Override" not in l and "grid=ceil" not in l]
out = head + [
    "; @launch kernel=proj_kernel grid=(184,1,1) block=(256,1,1) lds=24576",
    "; @launch kernel=attn_kernel grid=(256,1,1) block=(256,1,1) lds=131072",
    "; @launch kernel=final_kernel grid=(256,1,1) block=(256,1,1) lds=36864",
    '.amdgcn_target "amdgcn-amd-amdhsa--gfx950"', ".text"]
k1(); k2(); k3()
dst = sys.argv[1] if len(sys.argv) > 1 else f"cdna_kernels/{NAME}.s"
open(dst, "w").write("\n".join(out + L) + "\n")
print("wrote", dst, len(L), "lines")
```

```python
import sys, os
NAME = "recurrent_scan__gqa_block_cached__glu_gated_swiglu__decode"
STAMP = int(os.environ.get("STAMP", "0"))
PURE = int(os.environ.get("PURE", "0"))
D = int(os.environ.get("D", "4"))
ROTM = int(os.environ.get("ROTM", "1"))
LOG2E = 0x3fb8aa3b
SCALE = 0x3db504f3
EPS   = 0x3727c5ac
SPIN_MAX = 400000
RSH = 13
R_O = 0; R_ML = 2048; R_S = 2560; R_F = 3072; R_P = 4096
WS_QI = 256 << RSH
WS_USED = WS_QI + 256 * 1024
STAMP_OFF = 0x300000
LB = 131072
F_LANDED = LB + 0; F_CONS = LB + 16; F_QCNT = LB + 32; F_QRDY = LB + 36; F_ALLC = LB + 40; F_CLR = LB + 48
L_XN = LB + 256
L_QP = LB + 2304
L_Q = LB + 3072
L_CMB = LB + 4096
L_OL = L_CMB + 4*2304
L_RED = L_OL + 1024
L_G = L_RED + 2048
LDS_TOTAL = L_G + 512

L = []
def e(s): L.append("    " + s)
def lab(s): L.append(s + ":")
def raw(s): L.append(s)
_uid = [0]
def uid(p):
    _uid[0] += 1
    return f"{p}_{_uid[0]}"
def srd(d, lo, hi, nrec):
    e(f"s_mov_b32 s{d}, s{lo}")
    e(f"s_mov_b32 s{d+1}, s{hi}")
    e(f"s_mov_b32 s{d+2}, {nrec}")
    e(f"s_mov_b32 s{d+3}, 0x00020000")
DPPM = "row_mask:0xf bank_mask:0xf"
def dpp_steps(op, regs, ctrls):
    for ctrl in ctrls:
        e("s_nop 1")
        for v in regs:
            e(f"v_{op}_f32_dpp v{v}, v{v}, v{v} {ctrl} {DPPM}")
ROWCTR = ("quad_perm:[1,0,3,2]", "quad_perm:[2,3,0,1]", "row_ror:4", "row_ror:8")
def cross_rows(op, regs, tmps):
    for sw in ("v_permlane16_swap_b32", "v_permlane32_swap_b32"):
        for v, t in zip(regs, tmps):
            e(f"v_mov_b32 v{t}, v{v}")
        e("s_nop 1")
        for v, t in zip(regs, tmps):
            e(f"{sw} v{v}, v{t}")
        e("s_nop 0")
        for v, t in zip(regs, tmps):
            e(f"v_{op}_f32 v{v}, v{v}, v{t}")
def allreduce(op, regs, tmps):
    dpp_steps(op, regs, ROWCTR)
    cross_rows(op, regs, tmps)
def swap_add(sw, pairs):
    e("s_nop 1")
    for a, b in pairs:
        e(f"{sw} v{a}, v{b}")
    e("s_nop 0")
    for a, b in pairs:
        e(f"v_add_f32 v{a}, v{a}, v{b}")
def unpack(dlo, dhi, src):
    e(f"v_lshlrev_b32 v{dlo}, 16, v{src}")
    e(f"v_and_b32 v{dhi}, 0xffff0000, v{src}")
def round_pair(a, b, t):
    e(f"v_cvt_pk_bf16_f32 v{t}, v{a}, v{b}")
    unpack(a, b, t)
def stamp(i):
    if STAMP:
        e(f"s_memrealtime s[{84+2*i}:{85+2*i}]")

def layernorm(nb, xa, o0, t0):
    f = o0
    B = range(nb)
    for b in B:
        for j in range(4):
            unpack(f + b*8 + 2*j, f + b*8 + 2*j + 1, xa + b*4 + j)
    S = [t0, t0+1][:nb]; U = [t0+2, t0+3][:nb]; Q = [t0+4, t0+5][:nb]; d = t0+6; R = [t0+7, t0+8][:nb]
    for b in B:
        e(f"v_add_f32 v{S[b]}, v{f+b*8}, v{f+b*8+1}")
        for j in range(2, 8):
            e(f"v_add_f32 v{S[b]}, v{S[b]}, v{f+b*8+j}")
    allreduce("add", S, U)
    for b in B: e(f"v_mul_f32 v{S[b]}, 0x3b000000, v{S[b]}")
    for b in B:
        e(f"v_sub_f32 v{d}, v{f+b*8}, v{S[b]}")
        e(f"v_mul_f32 v{Q[b]}, v{d}, v{d}")
        for j in range(1, 8):
            e(f"v_sub_f32 v{d}, v{f+b*8+j}, v{S[b]}")
            e(f"v_fmac_f32 v{Q[b]}, v{d}, v{d}")
    allreduce("add", Q, U)
    for b in B: e(f"v_mul_f32 v{Q[b]}, 0x3b000000, v{Q[b]}")
    for b in B:
        round_pair(S[b], Q[b], d)
        e(f"v_add_f32 v{Q[b]}, {EPS:#x}, v{Q[b]}")
        e(f"v_cvt_pk_bf16_f32 v{d}, v{Q[b]}, v{Q[b]}")
        e(f"v_lshlrev_b32 v{Q[b]}, 16, v{d}")
        e(f"v_sqrt_f32 v{Q[b]}, v{Q[b]}")
        e("s_nop 0")
        e(f"v_cvt_pk_bf16_f32 v{d}, v{Q[b]}, v{Q[b]}")
        e(f"v_lshlrev_b32 v{Q[b]}, 16, v{d}")
        e(f"v_rcp_f32 v{R[b]}, v{Q[b]}")
    e("s_nop 0")
    ta, tb, tc, td = t0+9, t0+10, t0+11, t0+12
    for b in B:
        s, q, r = S[b], Q[b], R[b]
        for j in range(0, 8, 2):
            a0, a1 = f+b*8+j, f+b*8+j+1
            e(f"v_sub_f32 v{a0}, v{a0}, v{s}")
            e(f"v_sub_f32 v{a1}, v{a1}, v{s}")
            round_pair(a0, a1, d)
            e(f"v_mul_f32 v{ta}, v{a0}, v{r}")
            e(f"v_mul_f32 v{tb}, v{a1}, v{r}")
            e(f"v_fma_f32 v{tc}, -v{ta}, v{q}, v{a0}")
            e(f"v_fma_f32 v{td}, -v{tb}, v{q}, v{a1}")
            e(f"v_fmac_f32 v{ta}, v{tc}, v{r}")
            e(f"v_fmac_f32 v{tb}, v{td}, v{r}")
            e(f"v_cvt_pk_bf16_f32 v{d}, v{ta}, v{tb}")
            e(f"v_and_b32 v{a0}, 0xffff, v{d}")
            e(f"v_lshrrev_b32 v{a1}, 16, v{d}")

def silu(dst, src, t1, t2):
    e(f"v_mul_f32 v{t1}, 0xbfb8aa3b, v{src}")
    e(f"v_exp_f32 v{t1}, v{t1}")
    e("s_nop 0")
    e(f"v_add_f32 v{t1}, 1.0, v{t1}")
    e(f"v_rcp_f32 v{t2}, v{t1}")
    e("s_nop 0")
    e(f"v_mul_f32 v{dst}, v{src}, v{t2}")

def lds_wait_ge(vaddr, off, need, vt, st, sleep=1):
    l0, l1 = uid("LW"), uid("LG")
    e("s_mov_b32 s82, 0")
    lab(l0)
    e(f"ds_read_b32 v{vt}, v{vaddr} offset:{off}")
    e("s_waitcnt lgkmcnt(0)")
    e(f"v_readfirstlane_b32 s{st}, v{vt}")
    e("s_add_u32 s82, s82, 1")
    e(f"s_cmp_ge_u32 s{st}, {need}")
    e(f"s_cbranch_scc1 {l1}")
    e(f"s_sleep {sleep}")
    e("s_cmp_lt_u32 s82, 0x800000")
    e(f"s_cbranch_scc1 {l0}")
    lab(l1)

def poll_loads(issue, regs, vt, scnt, sleep=None):
    l0, l1 = uid("PL"), uid("PG")
    e(f"s_mov_b32 s{scnt}, 0")
    lab(l0)
    issue()
    e("s_waitcnt vmcnt(0)")
    rs = list(regs)
    e(f"v_mov_b32 v{vt}, v{rs[0]}")
    i = 1
    while i < len(rs):
        if i + 1 < len(rs):
            e(f"v_max3_u32 v{vt}, v{vt}, v{rs[i]}, v{rs[i+1]}"); i += 2
        else:
            e(f"v_max_u32 v{vt}, v{vt}, v{rs[i]}"); i += 1
    e(f"v_cmp_eq_u32 vcc, -1, v{vt}")
    e(f"s_add_u32 s{scnt}, s{scnt}, 1")
    e("s_cmp_eq_u64 vcc, 0")
    e(f"s_cbranch_scc1 {l1}")
    if sleep is not None: e(f"s_sleep {sleep}")
    e(f"s_cmp_lt_u32 s{scnt}, {SPIN_MAX}")
    e(f"s_cbranch_scc1 {l0}")
    lab(l1)

def wait_all_counters(vt, va, scnt):
    l0, l1 = uid("WC"), uid("WG")
    e(f"v_and_b32 v{va}, 3, v1")
    e(f"v_lshlrev_b32 v{va}, 6, v{va}")
    e(f"v_and_b32 v{vt}, 12, v1")
    e(f"v_add_u32 v{va}, v{va}, v{vt}")
    e(f"s_mov_b32 s{scnt}, 0")
    lab(l0)
    e(f"buffer_load_dword v{vt}, v{va}, s[40:43], 0 offen sc1")
    e("s_waitcnt vmcnt(0)")
    e(f"v_cmp_gt_u32 vcc, 16, v{vt}")
    e(f"s_add_u32 s{scnt}, s{scnt}, 1")
    e("s_cmp_eq_u64 vcc, 0")
    e(f"s_cbranch_scc1 {l1}")
    e("s_sleep 32")
    e(f"s_cmp_lt_u32 s{scnt}, {SPIN_MAX}")
    e(f"s_cbranch_scc1 {l0}")
    lab(l1)

def red16(acc):
    e("s_nop 3")
    swap_add("v_permlane32_swap_b32", [(acc+j, acc+8+j) for j in range(8)])
    swap_add("v_permlane16_swap_b32", [(acc+j, acc+4+j) for j in range(4)])
    dpp_steps("add", [acc+j for j in range(4)], ("row_ror:8",))

def red16_addr(dst, tmp, cq):
    e(f"v_lshrrev_b32 v{dst}, 1, v3")
    e(f"v_lshlrev_b32 v{dst}, 8, v{dst}")
    e(f"v_and_b32 v{tmp}, 1, v3")
    e(f"v_lshl_add_u32 v{dst}, v{tmp}, 4, v{dst}")
    e(f"v_lshl_add_u32 v{dst}, v{cq}, 5, v{dst}")

KNAME = NAME + "_kernel"
raw(f".globl {KNAME}"); raw(".p2align 8"); raw(f".type {KNAME},@function"); lab(KNAME)
stamp(0)
e("s_cmp_ge_u32 s2, 256")
e("s_cbranch_scc1 DONE")
e("s_load_dwordx16 s[4:19], s[0:1], 0")
e("s_load_dwordx8 s[20:27], s[0:1], 64")
e("v_lshrrev_b32 v1, 6, v0")
e("s_nop 0")
e("v_readfirstlane_b32 s28, v1")
e("v_and_b32 v1, 63, v0")
e("s_and_b32 s29, s2, 15")
e("s_lshr_b32 s30, s2, 4")
e("s_bfe_u32 s31, s2, 0x10003")
e("s_and_b32 s32, s2, 7")
e(f"s_lshl_b32 s34, s2, {RSH}")
e("s_lshr_b32 s35, s2, 5")
e("v_and_b32 v2, 15, v1")
e("v_lshrrev_b32 v3, 4, v1")
e("s_cmp_ge_u32 s28, 4")
e("s_waitcnt lgkmcnt(0)")
srd(36, 26, 27, WS_USED if not STAMP else 0x400000)
srd(44, 4, 5, 2048)
e(f"s_mov_b32 s60, {LOG2E:#x}")
e(f"s_mov_b32 s61, {SCALE:#x}")
e("s_cbranch_scc1 ROLE_HI")
if PURE == 1: e("s_branch DONE")
if PURE == 3:
    srd(48, 10, 11, 512*4096*2)
    e("v_lshrrev_b32 v5, 3, v0"); e("v_and_b32 v6, 7, v0")
    e("v_lshlrev_b32 v7, 15, v5"); e("v_lshl_add_u32 v7, v6, 4, v7")
    e("s_lshl_b32 s62, s31, 4"); e("s_add_u32 s62, s62, s30")
    e("s_and_b32 s63, s62, 7"); e("s_lshl_b32 s63, s63, 7")
    e("s_lshr_b32 s62, s62, 3"); e("s_lshl_b32 s62, s62, 20")
    e("s_add_u32 s62, s62, s63"); e("s_lshl_b32 s63, s32, 10"); e("s_add_u32 s62, s62, s63")
    for i in range(4):
        if i: e("s_add_u32 s62, s62, 8192")
        e(f"buffer_load_dwordx4 v[{32+4*i}:{35+4*i}], v7, s[48:51], s62 offen nt")
    e("s_waitcnt vmcnt(0)")
    stamp(1)
    e("s_branch DONE")

srd(48, 10, 11, 512*4096*2)
e("v_lshlrev_b32 v4, 4, v1")
e("s_lshl_b32 s33, s31, 10")
e("buffer_load_dwordx4 v[8:11], v4, s[44:47], s33 offen")
e("v_lshrrev_b32 v5, 2, v0")
e("v_and_b32 v6, 3, v0")
e("v_lshlrev_b32 v7, 16, v5")
e("v_lshl_add_u32 v7, v6, 4, v7")
e("s_lshl_b32 s62, s32, 10")
e("s_lshl_b32 s63, s30, 6")
e("s_add_u32 s62, s62, s63")
WQNT = os.environ.get("WQNT", " nt")
for i in range(8):
    if i: e(f"s_add_u32 s62, s62, 8192")
    e(f"buffer_load_dwordx4 v[{32+4*i}:{35+4*i}], v7, s[48:51], s62 offen{WQNT}")
if PURE == 2:
    e("s_waitcnt vmcnt(0)")
    stamp(1)
    e("s_branch DONE")
e("s_barrier")
e(f"v_mov_b32 v14, {LB}")
e("v_mov_b32 v15, 1")
e("s_waitcnt vmcnt(8)")
layernorm(1, 8, 64, 80)
e("v_lshlrev_b32 v12, 5, v1")
e(f"v_add_u32 v12, {L_XN}, v12")
e("ds_write_b128 v12, v[64:67]")
e("ds_write_b128 v12, v[68:71] offset:16")
e("v_lshlrev_b32 v13, 5, v5")
e(f"v_add_u32 v13, {L_XN}, v13")
e("s_waitcnt lgkmcnt(0)")
e("ds_read_b128 v[64:67], v13")
e("ds_read_b128 v[68:71], v13 offset:16")
for i in range(8):
    e(f"v_mov_b32 v{96+i}, 0")
e("s_waitcnt lgkmcnt(0)")
for i in range(8):
    e(f"v_lshlrev_b32 v{72+i}, 16, v{64+i}")
e("s_waitcnt vmcnt(0)")
for i in range(8):
    for j in range(4):
        w = 32 + 4*i + j
        e(f"v_dot2_f32_bf16 v{96+2*j}, v{w}, v{64+i}, v{96+2*j}")
        e(f"v_dot2_f32_bf16 v{97+2*j}, v{w}, v{72+i}, v{97+2*j}")
e("s_nop 3")
swap_add("v_permlane32_swap_b32", [(96+j, 100+j) for j in range(4)])
swap_add("v_permlane16_swap_b32", [(96+j, 98+j) for j in range(2)])
dpp_steps("add", [96, 97], ("row_ror:4", "row_ror:8"))
e("v_lshlrev_b32 v12, 5, v6")
e("v_lshl_add_u32 v12, v3, 3, v12")
e("s_lshl_b32 s33, s28, 7")
e(f"s_add_u32 s33, s33, {L_QP}")
e("v_add_u32 v12, s33, v12")
e("v_and_b32 v13, 12, v1")
e("v_cmp_eq_u32 vcc, 0, v13")
e("s_and_saveexec_b64 s[64:65], vcc")
e("ds_write_b64 v12, v[96:97]")
e("s_mov_b64 exec, s[64:65]")
e("s_waitcnt lgkmcnt(0)")
e("v_cmp_eq_u32 vcc, 0, v1")
e("s_and_saveexec_b64 s[64:65], vcc")
e(f"ds_add_u32 v14, v15 offset:{F_QCNT-LB}")
e("s_mov_b64 exec, s[64:65]")
lab("C_pre")
e("s_lshl_b32 s33, s28, 14")
e("v_and_b32 v145, 7, v2")
e("v_lshlrev_b32 v145, 1, v145")
e("v_xor_b32 v145, v3, v145")
e("v_lshlrev_b32 v145, 4, v145")
e("v_lshl_add_u32 v145, v2, 8, v145")
e("v_add_u32 v160, s33, v145")
for s in range(1, 4):
    e(f"v_xor_b32 v{160+s}, {s*64}, v160")
for s in range(4):
    e(f"v_add_u32 v{164+s}, 0x10000, v{160+s}")
e("v_bfe_u32 v145, v1, 2, 2")
e("v_lshl_add_u32 v145, v3, 2, v145")
e("v_and_b32 v146, 7, v145")
e("v_lshlrev_b32 v146, 1, v146")
e("v_bfe_u32 v147, v1, 1, 1")
e("v_xor_b32 v146, v146, v147")
e("v_lshlrev_b32 v146, 4, v146")
e("v_lshl_add_u32 v146, v145, 8, v146")
e("v_and_b32 v147, 1, v1")
e("v_lshl_add_u32 v146, v147, 3, v146")
e("v_add_u32 v146, 8192, v146")
e("v_add_u32 v168, s33, v146")
for db in range(1, 8):
    e(f"v_xor_b32 v{168+db}, {db*32}, v168")
for db in range(8):
    e(f"v_add_u32 v{176+db}, 0x10000, v{168+db}")
for i in range(32):
    e(f"v_mov_b32 v{96+i}, 0")
e("v_mov_b32 v140, 0xff800000")
e("v_mov_b32 v141, 0")
e("s_lshl_b32 s66, s28, 1")
e("s_add_u32 s66, s66, 1")
e("s_mov_b32 s67, 0")
e("s_lshl_b32 s33, s28, 2")
e(f"s_add_u32 s33, s33, {F_CONS}")
e("v_mov_b32 v150, s33")
e("s_mov_b32 s68, 0")
KF = (32, 184); VF = (64, 216)
def c_load(p):
    kf, vf = KF[p], VF[p]
    sk = uid("CK")
    e("s_cmp_ge_u32 s68, s66")
    e(f"s_cbranch_scc1 {sk}")
    lds_wait_ge(14, F_LANDED-LB, "s66", 144, 68, sleep=1)
    lab(sk)
    for t in range(2):
        for s in range(4):
            r = kf + (t*4+s)*4
            e(f"ds_read_b128 v[{r}:{r+3}], v{160+4*p+s} offset:{t*4096}")
    e("s_add_u32 s66, s66, 1")
    sk = uid("CV")
    e("s_cmp_ge_u32 s68, s66")
    e(f"s_cbranch_scc1 {sk}")
    lds_wait_ge(14, F_LANDED-LB, "s66", 144, 68, sleep=1)
    lab(sk)
    e("s_waitcnt lgkmcnt(4)")
    for db in range(8):
        for t in range(2):
            r = vf + db*4 + t*2
            e(f"ds_read_b64_tr_b16 v[{r}:{r+1}], v{168+8*p+db} offset:{t*4096}")
        if db in (2, 5):
            e("s_waitcnt lgkmcnt(4)")
    e("s_add_u32 s67, s67, 1")
    e("v_mov_b32 v151, s67")
    e("s_add_u32 s66, s66, 7")
    e("s_waitcnt lgkmcnt(0)")
    e("ds_write_b32 v150, v151")
def c_compute(p):
    kf, vf = KF[p], VF[p]
    for s in range(4):
        for t in range(2):
            r = kf + (t*4+s)*4
            d = 128 + 4*t
            c = "0" if s == 0 else f"v[{d}:{d+3}]"
            e(f"v_mfma_f32_16x16x32_bf16 v[{d}:{d+3}], v[{r}:{r+3}], v[{16+4*s}:{19+4*s}], {c}")
    e("s_nop 7")
    e("s_nop 1")
    S = list(range(128, 136))
    for j in range(0, 8, 2):
        round_pair(S[j], S[j+1], 152 + j//2)
    for j in range(8):
        e(f"v_mul_f32 v{S[j]}, s61, v{S[j]}")
    for j in range(0, 8, 2):
        round_pair(S[j], S[j+1], 152 + j//2)
    e("v_max3_f32 v144, v128, v129, v130")
    e("v_max3_f32 v145, v131, v132, v133")
    e("v_max3_f32 v144, v144, v134, v135")
    e("v_max_f32 v144, v144, v145")
    cross_rows("max", [144], [145])
    e("v_max_f32 v144, v144, v140")
    e("v_sub_f32 v145, v140, v144")
    e("v_mul_f32 v145, s60, v145")
    e("v_exp_f32 v145, v145")
    e("v_mov_b32 v140, v144")
    e("v_mul_f32 v146, s60, v144")
    for j in range(8):
        e(f"v_fma_f32 v{S[j]}, v{S[j]}, s60, -v146")
    for j in range(8):
        e(f"v_exp_f32 v{S[j]}, v{S[j]}")
    e("v_mul_f32 v141, v141, v145")
    for j in range(8):
        e(f"v_add_f32 v141, v141, v{S[j]}")
    for j in range(4):
        e(f"v_cvt_pk_bf16_f32 v{136+j}, v{S[2*j]}, v{S[2*j+1]}")
    for i in range(32):
        e(f"v_mul_f32 v{96+i}, v{96+i}, v145")
    e("s_nop 1")
    for db in range(8):
        e(f"v_mfma_f32_16x16x32_bf16 v[{96+4*db}:{99+4*db}], v[{vf+4*db}:{vf+4*db+3}], v[136:139], v[{96+4*db}:{99+4*db}]")
    e("s_nop 7")
    e("s_nop 1")
c_load(0)
c_load(1)
lds_wait_ge(14, F_QRDY-LB, 1, 144, 33, sleep=1)
stamp(2)
for i in range(16):
    e(f"v_mov_b32 v{16+i}, 0")
e("v_lshlrev_b32 v12, 8, v2")
e("v_lshl_add_u32 v12, v3, 4, v12")
e(f"v_add_u32 v12, {L_Q}, v12")
e("v_cmp_gt_u32 vcc, 4, v2")
e("s_and_saveexec_b64 s[64:65], vcc")
for s in range(4):
    e(f"ds_read_b128 v[{16+4*s}:{19+4*s}], v12 offset:{s*64}")
e("s_mov_b64 exec, s[64:65]")
e("s_waitcnt lgkmcnt(0)")
c_compute(0)
e("s_branch C_mid")
lab("C_loop")
c_load(0)
c_compute(0)
c_load(1)
lab("C_mid")
c_compute(1)
e("s_cmp_lt_u32 s67, 16")
e("s_cbranch_scc1 C_loop")
stamp(3)
cross_rows("add", [141], [145])
e(f"s_mul_i32 s33, s28, 2304")
e(f"s_add_u32 s33, s33, {L_CMB}")
e("v_lshlrev_b32 v144, 9, v2")
e("v_lshl_add_u32 v144, v3, 4, v144")
e("v_add_u32 v144, s33, v144")
e("v_lshlrev_b32 v145, 3, v2")
e("v_add_u32 v145, s33, v145")
e("v_cmp_gt_u32 vcc, 4, v2")
e("s_and_saveexec_b64 s[64:65], vcc")
for db in range(8):
    e(f"ds_write_b128 v144, v[{96+4*db}:{99+4*db}] offset:{db*64}")
e("ds_write_b64 v145, v[140:141] offset:2048")
e("s_mov_b64 exec, s[64:65]")
e("s_waitcnt lgkmcnt(0)")
e("s_barrier")
e("s_lshl_b32 s33, s28, 9")
e(f"s_add_u32 s33, s33, {L_CMB}")
e("v_lshlrev_b32 v144, 3, v1")
e("v_add_u32 v146, s33, v144")
e("s_lshl_b32 s33, s28, 3")
e(f"s_add_u32 s33, s33, {L_CMB + 2048}")
e("v_mov_b32 v145, s33")
for w in range(4):
    e(f"ds_read_b64 v[{32+2*w}:{33+2*w}], v146 offset:{w*2304}")
    e(f"ds_read_b64 v[{40+2*w}:{41+2*w}], v145 offset:{w*2304}")
e("s_waitcnt lgkmcnt(0)")
e("v_max3_f32 v48, v40, v42, v44")
e("v_max_f32 v48, v48, v46")
for w in range(4):
    e(f"v_sub_f32 v{50+w}, v{40+2*w}, v48")
    e(f"v_mul_f32 v{50+w}, s60, v{50+w}")
    e(f"v_exp_f32 v{50+w}, v{50+w}")
e("s_nop 0")
e("v_mul_f32 v49, v41, v50")
e("v_mul_f32 v54, v32, v50")
e("v_mul_f32 v55, v33, v50")
for w in range(1, 4):
    e(f"v_fmac_f32 v49, v{41+2*w}, v{50+w}")
    e(f"v_fmac_f32 v54, v{32+2*w}, v{50+w}")
    e(f"v_fmac_f32 v55, v{33+2*w}, v{50+w}")
e("s_lshl_b32 s33, s28, 9")
e("s_add_u32 s33, s33, s34")
e(f"buffer_store_dwordx2 v[54:55], v144, s[36:39], s33 offen offset:{R_O} sc1")
e("s_lshl_b32 s33, s28, 3")
e("s_add_u32 s33, s33, s34")
e("v_cmp_eq_u32 vcc, 0, v1")
e("s_and_saveexec_b64 s[64:65], vcc")
e(f"buffer_store_dwordx2 v[48:49], v144, s[36:39], s33 offen offset:{R_ML} sc1")
e("s_mov_b64 exec, s[64:65]")
stamp(4)
e("s_bfe_u32 s62, s2, 0x20003")
e("s_lshr_b32 s63, s28, 1")
e("s_lshl_b32 s63, s63, 3")
e("s_add_u32 s63, s63, s32")
e(f"s_lshl_b32 s63, s63, {RSH}")
e("s_lshl_b32 s69, s62, 9")
e("s_add_u32 s69, s69, s63")
e("s_lshl_b32 s70, s62, 3")
e("s_add_u32 s70, s70, s63")
e("v_and_b32 v4, 127, v0")
e("v_lshlrev_b32 v4, 2, v4")
e(f"v_lshlrev_b32 v5, {RSH+4}, v2")
for sp in range(1, 16):
    e(f"v_add_u32 v{200+sp}, {sp << (RSH+4)}, v4")
def t1_issue():
    e(f"buffer_load_dwordx2 v[6:7], v5, s[36:39], s70 offen offset:{R_ML} sc1")
    for sp in range(16):
        e(f"buffer_load_dword v{8+sp}, v{4 if sp == 0 else 200+sp}, s[36:39], s69 offen offset:{R_O} sc1")
poll_loads(t1_issue, [6, 7] + list(range(8, 24)), 28, 66)
stamp(5)
e("v_mov_b32 v28, v6")
dpp_steps("max", [28], ROWCTR)
e("v_sub_f32 v29, v6, v28")
e("v_mul_f32 v29, s60, v29")
e("v_exp_f32 v29, v29")
e("s_nop 0")
e("v_mul_f32 v30, v29, v7")
dpp_steps("add", [30], ROWCTR)
e("v_rcp_f32 v31, v30")
e("s_nop 1")
for sp in range(16):
    e(f"v_readlane_b32 s{66+sp}, v29, {sp}")
e("s_nop 1")
e("v_mul_f32 v27, s66, v8")
for sp in range(1, 16):
    e(f"v_fmac_f32 v27, s{66+sp}, v{8+sp}")
e("v_mul_f32 v8, v27, v31")
e("v_fma_f32 v9, -v8, v30, v27")
e("v_fmac_f32 v8, v9, v31")
e("v_cvt_pk_bf16_f32 v8, v8, v8")
e("v_and_b32 v8, 0xffff, v8")
e("v_lshlrev_b32 v9, 2, v0")
e(f"v_add_u32 v9, {L_OL}, v9")
e("ds_write_b32 v9, v8")
e("s_waitcnt lgkmcnt(0)")
e("s_barrier")
e("s_barrier")
e("s_and_b32 s33, s2, 31")
e("s_cmp_lg_u32 s33, 28")
e("s_cbranch_scc1 DONE")
e("s_cmp_ge_u32 s28, 2")
e("s_cbranch_scc1 DONE")
e("v_lshlrev_b32 v4, 2, v0")
e(f"s_lshl_b32 s33, s35, {RSH+5}")
for hh in range(1, 32):
    e(f"v_add_u32 v{200+hh}, {hh << RSH}, v4")
e("s_lshl_b32 s62, s35, 7")
e("v_lshlrev_b32 v5, 1, v1")
e("s_lshl_b32 s63, s28, 10")
e("s_add_u32 s62, s62, s63")
e("buffer_load_ushort v6, v5, s[44:47], s62 offen")
e(f"v_add_u32 v7, {L_G}, v4")
e("ds_read_b32 v100, v7")
def t2_issue():
    for hh in range(32):
        e(f"buffer_load_dword v{64+hh}, v{4 if hh == 0 else 200+hh}, s[36:39], s33 offen offset:{R_S} sc1")
poll_loads(t2_issue, list(range(64, 96)), 28, 66)
for st in (16, 8, 4, 2, 1):
    for k in range(st):
        e(f"v_add_f32 v{64+k}, v{64+k}, v{64+k+st}")
e("s_waitcnt lgkmcnt(0)")
e("v_cvt_pk_bf16_f32 v64, v64, v64")
e("v_lshlrev_b32 v64, 16, v64")
e("v_mul_f32 v67, v64, v100")
e("v_cvt_pk_bf16_f32 v67, v67, v67")
e("v_lshlrev_b32 v67, 16, v67")
e("v_lshlrev_b32 v6, 16, v6")
e("v_add_f32 v67, v6, v67")
e("v_cvt_pk_bf16_f32 v67, v67, v67")
srd(48, 22, 23, 2048)
e("buffer_store_short v67, v5, s[48:51], s62 offen")
stamp(6)
e("s_branch DONE")

lab("ROLE_HI")
srd(48, 12, 13, 4096*512*2)
e("v_subrev_u32 v4, 256, v0")
e("v_lshrrev_b32 v5, 3, v4")
e("v_and_b32 v6, 7, v4")
e("v_lshlrev_b32 v7, 12, v5")
e("v_lshl_add_u32 v7, v6, 4, v7")
e("s_lshl_b32 s62, s32, 2")
e("s_bfe_u32 s63, s2, 0x20003")
e("s_add_u32 s62, s62, s63")
e("s_lshl_b32 s62, s62, 17")
e("s_lshl_b32 s63, s35, 7")
e("s_add_u32 s62, s62, s63")
e(f"v_mov_b32 v24, {LB}")
e("s_cmp_lg_u32 s28, 4")
e("s_cbranch_scc1 ROLE_H")
def wo_loads():
    for i in range(4):
        e(f"buffer_load_dwordx4 v[{32+4*i}:{35+4*i}], v7, s[48:51], s62 offen offset:{i*1024} nt")
e("s_lshl_b32 s64, s29, 23")
e("s_lshl_b32 s65, s30, 19")
e("s_add_u32 s64, s64, s65")
e("s_add_u32 s52, s6, s64"); e("s_addc_u32 s53, s7, 0"); e("s_mov_b32 s54, 524288"); e("s_mov_b32 s55, 0x00020000")
e("s_add_u32 s56, s8, s64"); e("s_addc_u32 s57, s9, 0"); e("s_mov_b32 s58, 524288"); e("s_mov_b32 s59, 0x00020000")
e("v_lshlrev_b32 v8, 1, v3")
e("v_xor_b32 v8, v2, v8")
e("v_lshlrev_b32 v8, 4, v8")
e("v_lshl_add_u32 v8, v3, 8, v8")
e("v_xor_b32 v9, 0x80, v8")
e(f"s_mul_i32 s66, s2, {ROTM}")
e("s_and_b32 s66, s66, 63")
e("s_lshl_b32 s66, s66, 13")
e("s_mov_b32 s67, 0")
def dma(srdb):
    for half in range(2):
        if half:
            e("s_add_u32 m0, s67, 4096")
            e("s_add_u32 s68, s66, 4096")
        else:
            e("s_mov_b32 m0, s67")
            e("s_nop 0")
        so = 68 if half else 66
        for n in range(4):
            e(f"buffer_load_dwordx4 v{9 if (n & 1) else 8}, s[{srdb}:{srdb+3}], s{so} offen offset:{n*1024} nt lds")
    e("s_add_u32 s67, s67, 8192")
    e("s_and_b32 s67, s67, 0x1ffff")
def adv():
    e("s_add_u32 s66, s66, 8192")
    e("s_and_b32 s66, s66, 0x7ffff")
assert D % 2 == 0
for n in range(D):
    dma(52 if n % 2 == 0 else 56)
    if n % 2: adv()
e("v_lshlrev_b32 v15, 2, v1")
e(f"v_add_u32 v15, {LB}, v15")
e("v_mov_b32 v16, 0")
e("ds_write_b32 v15, v16")
e("s_waitcnt lgkmcnt(0)")
e("s_barrier")
e("s_mov_b32 s69, 0")
e(f"s_mov_b32 s70, {D//2}")
lab("L_loop")
for kv in range(2):
    e(f"s_waitcnt vmcnt({(D-1)*8})")
    e("s_add_u32 s69, s69, 1")
    e("v_mov_b32 v16, s69")
    e(f"ds_write_b32 v24, v16 offset:{F_LANDED-LB}")
    if kv == 0 and not PURE:
        sk = uid("LF")
        e("s_cmp_lt_u32 s70, 8")
        e(f"s_cbranch_scc1 {sk}")
        e("s_and_b32 s71, s70, 3")
        e("s_lshl_b32 s71, s71, 2")
        e(f"s_add_u32 s71, s71, {F_CONS}")
        e("v_mov_b32 v17, s71")
        e("s_lshr_b32 s72, s70, 2")
        e("s_sub_u32 s72, s72, 1")
        lds_wait_ge(17, 0, "s72", 18, 73, sleep=1)
        lab(sk)
    dma(52 if kv == 0 else 56)
adv()
e("s_add_u32 s70, s70, 1")
if STAMP:
    for si, cnt in ((1, 8), (2, 16), (4, 32), (5, 64), (6, 96)):
        sk = uid("LS")
        e(f"s_cmp_lg_u32 s69, {cnt}")
        e(f"s_cbranch_scc1 {sk}")
        stamp(si)
        lab(sk)
e("s_cmp_lt_u32 s70, 64")
e("s_cbranch_scc1 L_loop")
wo_loads()
for j in range(D):
    e(f"s_waitcnt vmcnt({(D-1-j)*8 + 4})")
    e("s_add_u32 s69, s69, 1")
    e("v_mov_b32 v16, s69")
    e(f"ds_write_b32 v24, v16 offset:{F_LANDED-LB}")
e("s_waitcnt lgkmcnt(0)")
stamp(3)
e("s_branch DONE" if PURE else "s_branch HI_TAIL")

lab("ROLE_H")
if PURE: e("s_branch DONE")
e("s_cmp_lg_u32 s28, 5")
e("s_cbranch_scc1 ROLE_H67")
e("v_lshlrev_b32 v10, 4, v1")
e("s_lshl_b32 s71, s2, 10")
e(f"s_add_u32 s71, s71, {WS_QI}")
e("v_mov_b32 v16, -1"); e("v_mov_b32 v17, -1"); e("v_mov_b32 v18, -1"); e("v_mov_b32 v19, -1")
e("buffer_store_dwordx4 v[16:19], v10, s[36:39], s71 offen sc1")
e("s_barrier")
e("v_and_b32 v13, 3, v1")
e("v_lshlrev_b32 v13, 4, v13")
e("v_lshrrev_b32 v11, 2, v1")
e("v_lshlrev_b32 v11, 14, v11")
e("v_add_u32 v11, v11, v13")
e("s_lshl_b32 s72, s29, 10")
e("s_lshl_b32 s73, s30, 6")
e("s_add_u32 s72, s72, s73")
e(f"s_add_u32 s72, s72, {WS_QI}")
e("v_mov_b32 v15, 1")
lds_wait_ge(24, F_QCNT-LB, 4, 16, 33, sleep=0)
e("v_lshlrev_b32 v12, 3, v2")
e(f"v_add_u32 v12, {L_QP}, v12")
for w in range(4):
    e(f"ds_read_b64 v[{16+2*w}:{17+2*w}], v12 offset:{w*128}")
e("s_waitcnt lgkmcnt(0)")
e("v_add_f32 v16, v16, v18"); e("v_add_f32 v17, v17, v19")
e("v_add_f32 v20, v20, v22"); e("v_add_f32 v21, v21, v23")
e("v_add_f32 v16, v16, v20"); e("v_add_f32 v17, v17, v21")
e("v_cvt_pk_bf16_f32 v16, v16, v17")
e("v_lshlrev_b32 v12, 2, v2")
e(f"v_add_u32 v12, {L_Q}, v12")
e("ds_write_b32 v12, v16")
e(f"v_add_u32 v12, {L_Q}, v13")
e("s_waitcnt lgkmcnt(0)")
e("ds_read_b128 v[20:23], v12")
e("s_waitcnt vmcnt(0) lgkmcnt(0)")
e("buffer_store_dwordx4 v[20:23], v11, s[36:39], s72 offen sc1")
stamp(4)
poll_loads(lambda: e("buffer_load_dwordx4 v[16:19], v10, s[36:39], s71 offen sc1"), [16,17,18,19], 26, 66)
e(f"v_add_u32 v13, {L_Q}, v10")
e("ds_write_b128 v13, v[16:19]")
e("s_waitcnt lgkmcnt(0)")
e(f"ds_write_b32 v24, v15 offset:{F_QRDY-LB}")
e("buffer_store_dwordx4 v[20:23], v11, s[36:39], s72 offen sc1")
e("s_waitcnt lgkmcnt(0)")
srd(40, 24, 25, 256)
e("v_mov_b32 v8, -1"); e("v_mov_b32 v9, -1"); e("v_mov_b32 v10, -1"); e("v_mov_b32 v11, -1")
e("v_lshlrev_b32 v12, 4, v1")
e("s_add_u32 s33, s34, 4096")
for i in range(4):
    e(f"buffer_store_dwordx4 v[8:11], v12, s[36:39], s34 offen offset:{i*1024} sc1")
e("buffer_store_dwordx4 v[8:11], v12, s[36:39], s33 offen sc1")
e("s_and_b32 s83, s29, 3")
e("s_lshl_b32 s83, s83, 6")
e("s_and_b32 s33, s29, 12")
e("s_add_u32 s83, s83, s33")
e("v_mov_b32 v13, s83")
e("v_mov_b32 v14, 1")
e("s_waitcnt vmcnt(0)")
e("v_cmp_eq_u32 vcc, 0, v1")
e("s_and_saveexec_b64 s[64:65], vcc")
e("buffer_atomic_add v14, v13, s[40:43], 0 offen")
e("s_mov_b64 exec, s[64:65]")
wo_loads()
stamp(1)
lds_wait_ge(24, F_LANDED-LB, 32, 25, 33, sleep=8)
wait_all_counters(25, 26, 66)
e("v_mov_b32 v25, 1")
e(f"ds_write_b32 v24, v25 offset:{F_ALLC-LB}")
e("s_waitcnt lgkmcnt(0)")
stamp(2)
e("s_and_b32 s33, s2, 31")
e("s_cmp_lg_u32 s33, 28")
e("s_cbranch_scc1 HI_TAIL")
lds_wait_ge(24, F_LANDED-LB, 88, 25, 33, sleep=8)
e("v_lshlrev_b32 v13, 3, v1")
e(f"s_lshl_b32 s33, s35, {RSH+5}")
for hh in range(1, 28):
    e(f"v_add_u32 v{200+hh}, {hh << RSH}, v13")
def fr_issue():
    for hh in range(28):
        for pt in range(2):
            r = 64 + (hh*2+pt)*2
            e(f"buffer_load_dwordx2 v[{r}:{r+1}], v{13 if hh == 0 else 200+hh}, s[36:39], s33 offen offset:{R_F + pt*512} sc1")
poll_loads(fr_issue, list(range(64, 176)), 28, 66, sleep=64)
for k in range(1, 56):
    e(f"v_add_f32 v64, v64, v{64+2*k}")
    e(f"v_add_f32 v65, v65, v{65+2*k}")
round_pair(64, 65, 66)
silu(68, 64, 70, 71)
silu(69, 65, 70, 71)
round_pair(68, 69, 66)
e(f"v_add_u32 v13, {L_G}, v13")
e("ds_write_b64 v13, v[68:69]")
e("s_waitcnt lgkmcnt(0)")
stamp(3)
e("s_branch HI_TAIL")

lab("ROLE_H67")
e("s_barrier")
lds_wait_ge(24, F_QRDY-LB, 1, 25, 33, sleep=4)
wo_loads()
e("v_lshrrev_b32 v8, 3, v1")
e("v_and_b32 v9, 7, v1")
e("s_sub_u32 s74, s28, 6")
e("s_cmp_ge_u32 s2, 224")
e("s_cbranch_scc1 H67_noffn1")
e("s_cmp_eq_u32 s28, 6")
e("s_cselect_b32 s52, s16, s18")
e("s_cselect_b32 s53, s17, s19")
e(f"s_mov_b32 s54, {512*1792*2}")
e("s_mov_b32 s55, 0x00020000")
e("v_lshlrev_b32 v12, 4, v1")
e("buffer_load_dwordx4 v[16:19], v12, s[44:47], 0 offen")
e("buffer_load_dwordx4 v[20:23], v12, s[44:47], 0 offen offset:1024")
e("v_mul_u32_u24 v10, 28672, v8")
e("v_lshl_add_u32 v10, v9, 4, v10")
e("s_lshr_b32 s64, s2, 3")
e("s_lshl_b32 s64, s64, 7")
e("s_mul_i32 s65, s32, 229376")
e("s_add_u32 s66, s64, s65")
for i in range(8):
    if i: e("s_add_u32 s66, s66, 3584")
    e(f"buffer_load_dwordx4 v[{64+4*i}:{67+4*i}], v10, s[52:55], s66 offen nt")
e("s_waitcnt vmcnt(8)")
layernorm(2, 16, 128, 144)
e("s_lshl_b32 s64, s32, 3")
e("v_add_u32 v12, s64, v8")
e("v_lshlrev_b32 v12, 2, v12")
for i in range(16):
    e(f"ds_bpermute_b32 v{160+i}, v12, v{128+i}")
    if i == 7: e("s_waitcnt lgkmcnt(4)")
for i in range(16):
    e(f"v_mov_b32 v{96+i}, 0")
e("s_waitcnt lgkmcnt(0)")
for i in range(16):
    e(f"v_lshlrev_b32 v{176+i}, 16, v{160+i}")
e("s_waitcnt vmcnt(0)")
for i in range(8):
    for j in range(4):
        w = 64 + 4*i + j
        for b in range(2):
            a = 96 + 8*b + 2*j
            e(f"v_dot2_f32_bf16 v{a}, v{w}, v{160+8*b+i}, v{a}")
            e(f"v_dot2_f32_bf16 v{a+1}, v{w}, v{176+8*b+i}, v{a+1}")
red16(96)
red16_addr(11, 12, 9)
lds_wait_ge(24, F_ALLC-LB, 1, 25, 33, sleep=8)
e("s_lshl_b32 s66, s74, 9")
e("s_add_u32 s66, s66, s34")
e(f"s_add_u32 s66, s66, {R_P}")
e("v_and_b32 v12, 8, v1")
e("v_cmp_eq_u32 vcc, 0, v12")
e("s_and_saveexec_b64 s[64:65], vcc")
e("buffer_store_dwordx4 v[96:99], v11, s[36:39], s66 offen sc1")
e("s_mov_b64 exec, s[64:65]")
stamp(1)
lab("H67_noffn1")
e("s_and_b32 s64, s2, 31")
e("s_cmp_ge_u32 s64, 28")
e("s_cbranch_scc1 HI_TAIL")
srd(52, 20, 21, 1792*512*2)
e("v_lshlrev_b32 v10, 12, v8")
e("v_lshl_add_u32 v10, v9, 4, v10")
e("s_lshl_b32 s66, s64, 16")
e("s_lshl_b32 s67, s74, 15")
e("s_add_u32 s66, s66, s67")
e("s_add_u32 s66, s66, s63")
for i in range(4):
    e(f"buffer_load_dwordx4 v[{48+4*i}:{51+4*i}], v10, s[52:55], s66 offen offset:{i*1024} nt")
lds_wait_ge(24, F_ALLC-LB, 1, 25, 33, sleep=8)
e("v_lshlrev_b32 v11, 4, v8")
e(f"s_lshl_b32 s66, s64, {RSH+3}")
e("s_lshl_b32 s67, s74, 7")
e("s_add_u32 s66, s66, s67")
e(f"s_add_u32 s66, s66, {R_P}")
for rb in range(1, 8):
    e(f"v_add_u32 v{200+rb}, {rb << RSH}, v11")
def p_issue():
    for rb in range(8):
        for mb in range(4):
            r = 64 + (rb*4+mb)*4
            e(f"buffer_load_dwordx4 v[{r}:{r+3}], v{11 if rb == 0 else 200+rb}, s[36:39], s66 offen offset:{mb*256} sc1")
poll_loads(p_issue, list(range(64, 192)), 28, 68, sleep=48)
for rb in range(1, 8):
    for k in range(16):
        e(f"v_add_f32 v{64+k}, v{64+k}, v{64+rb*16+k}")
for k in range(8):
    round_pair(64+k, 72+k, 96)
    silu(97, 64+k, 98, 99)
    e("v_cvt_pk_bf16_f32 v96, v97, v97")
    e("v_lshlrev_b32 v97, 16, v96")
    e(f"v_mul_f32 v97, v97, v{72+k}")
    e("v_cvt_pk_bf16_f32 v96, v97, v97")
    e(f"v_and_b32 v{80+2*k}, 0xffff, v96")
    e(f"v_lshlrev_b32 v{81+2*k}, 16, v96")
for i in range(16):
    e(f"v_mov_b32 v{96+i}, 0")
for i in range(4):
    for j in range(4):
        w = 48 + 4*i + j
        for b in range(2):
            a = 96 + 8*b + 2*j
            e(f"v_dot2_f32_bf16 v{a}, v{w}, v{80+b*8+2*i}, v{a}")
            e(f"v_dot2_f32_bf16 v{a+1}, v{w}, v{81+b*8+2*i}, v{a+1}")
red16(96)
red16_addr(11, 12, 9)
e("s_lshl_b32 s66, s74, 9")
e("s_add_u32 s66, s66, s34")
e("v_and_b32 v12, 8, v1")
e("v_cmp_eq_u32 vcc, 0, v12")
e("s_and_saveexec_b64 s[64:65], vcc")
e(f"buffer_store_dwordx4 v[96:99], v11, s[36:39], s66 offen offset:{R_F} sc1")
e("s_mov_b64 exec, s[64:65]")
stamp(3)

lab("HI_TAIL")
e("s_waitcnt vmcnt(0)")
e("v_lshlrev_b32 v8, 4, v5")
e(f"v_add_u32 v8, {L_OL}, v8")
for i in range(16):
    e(f"v_mov_b32 v{96+i}, 0")
red16_addr(11, 12, 6)
e("s_sub_u32 s33, s28, 4")
e("s_lshl_b32 s33, s33, 9")
e(f"s_add_u32 s33, s33, {L_RED}")
e("v_add_u32 v11, s33, v11")
e("s_barrier")
e("s_barrier")
e("ds_read_b128 v[16:19], v8")
e("ds_read_b128 v[20:23], v8 offset:512")
e("s_waitcnt lgkmcnt(0)")
for i in range(8):
    e(f"v_lshlrev_b32 v{24+i}, 16, v{16+i}")
for i in range(4):
    for j in range(4):
        w = 32 + 4*i + j
        for b in range(2):
            a = 96 + 8*b + 2*j
            e(f"v_dot2_f32_bf16 v{a}, v{w}, v{16+b*4+i}, v{a}")
            e(f"v_dot2_f32_bf16 v{a+1}, v{w}, v{24+b*4+i}, v{a+1}")
red16(96)
e("v_and_b32 v12, 8, v1")
e("v_cmp_eq_u32 vcc, 0, v12")
e("s_and_saveexec_b64 s[64:65], vcc")
e("ds_write_b128 v11, v[96:99]")
e("s_mov_b64 exec, s[64:65]")
e("s_waitcnt lgkmcnt(0)")
e("s_barrier")
e("s_cmp_ge_u32 s28, 6")
e("s_cbranch_scc1 DONE")
e("v_lshlrev_b32 v12, 2, v4")
e(f"v_add_u32 v13, {L_RED}, v12")
for w in range(4):
    e(f"ds_read_b32 v{16+w}, v13 offset:{w*512}")
e("s_waitcnt lgkmcnt(0)")
e("v_add_f32 v16, v16, v17")
e("v_add_f32 v18, v18, v19")
e("v_add_f32 v16, v16, v18")
e(f"buffer_store_dword v16, v12, s[36:39], s34 offen offset:{R_S} sc1")
lab("DONE")
if STAMP:
    e("s_mov_b64 exec, -1")
    e("s_cmp_ge_u32 s2, 256")
    e("s_cbranch_scc1 DONE2")
    stamp(7)
    e("s_waitcnt lgkmcnt(0) vmcnt(0)")
    for i in range(8):
        e(f"v_mov_b32 v{8+i}, s{84+2*i}")
    e("s_lshl_b32 s33, s2, 8")
    e("s_lshl_b32 s34, s28, 5")
    e("s_add_u32 s33, s33, s34")
    e(f"s_add_u32 s33, s33, {STAMP_OFF}")
    e("v_mov_b32 v4, s33")
    e("v_and_b32 v5, 63, v0")
    e("v_cmp_eq_u32 vcc, 0, v5")
    e("s_and_saveexec_b64 s[64:65], vcc")
    e("buffer_store_dwordx4 v[8:11], v4, s[36:39], 0 offen")
    e("buffer_store_dwordx4 v[12:15], v4, s[36:39], 0 offen offset:16")
    lab("DONE2")
e("s_endpgm")
raw('.section .rodata,"a"')
raw(".p2align 6")
raw(f".amdhsa_kernel {KNAME}")
raw("  .amdhsa_next_free_vgpr 248")
raw("  .amdhsa_next_free_sgpr 100")
raw("  .amdhsa_accum_offset 248")
raw("  .amdhsa_group_segment_fixed_size 0")
raw("  .amdhsa_kernarg_size 96")
raw("  .amdhsa_user_sgpr_count 2")
raw("  .amdhsa_user_sgpr_kernarg_segment_ptr 1")
raw("  .amdhsa_system_sgpr_workgroup_id_x 1")
raw("  .amdhsa_float_denorm_mode_32 3")
raw(".end_amdhsa_kernel")
hdr = open(f"cdna_kernels/{NAME}.s.ref").read().split("\n")
head = [l for l in hdr if l.startswith(";") and "@launch" not in l]
out = head + [f"; @launch grid=(256,1,1) block=(512,1,1) lds={LDS_TOTAL}",
              '.amdgcn_target "amdgcn-amd-amdhsa--gfx950"', ".text"]
dst = sys.argv[1] if len(sys.argv) > 1 else f"cdna_kernels/{NAME}.s"
open(dst, "w").write("\n".join(out + L) + "\n")
print("wrote", dst, len(L), "lines; LDS", LDS_TOTAL)
```

```python
import sys, os
NAME = "recurrent_scan__gqa_block_cached__glu_gated_swiglu__decode"
STAMP = int(os.environ.get("STAMP", "0"))
PURE = int(os.environ.get("PURE", "0"))
D = int(os.environ.get("D", "4"))
ROTM = int(os.environ.get("ROTM", "1"))
SST = int(os.environ.get("SST", "54"))
POOL = 16 * (64 - SST)
ABL = int(os.environ.get("ABL", "0"))
MAP = int(os.environ.get("MAP", "1"))
GSH, MSH = (4, 0) if MAP else (0, 4)
LA = int(os.environ.get("LA", "2"))
PGATE = int(os.environ.get("PGATE", "56"))
FGATE = int(os.environ.get("FGATE", "80"))
LOG2E = 0x3fb8aa3b
SCALE = 0x3db504f3
EPS   = 0x3727c5ac
SPIN_MAX = 400000
RSH = 13
R_O = 0; R_ML = 2048; R_S = 2560; R_F = 3072; R_P = 4096
WS_QI = 256 << RSH
WS_TK = WS_QI + 256 * 1024
WS_USED = WS_TK + 16 * 256
STAMP_OFF = 0x300000
LB = 131072
F_LANDED = LB + 0; F_CONS = LB + 16; F_QCNT = LB + 32; F_QRDY = LB + 36; F_ALLC = LB + 40; F_CLR = LB + 48; F_TOTAL = LB + 4; F_TQN = LB + 52; F_LIDX = LB + 56
L_TQ = LB + 64
L_XN = LB + 256
L_QP = LB + 2304
L_Q = LB + 3072
L_CMB = LB + 4096
L_OL = L_CMB + 4*2304
L_RED = L_OL + 1024
L_G = L_RED + 2048
LDS_TOTAL = L_G + 512

L = []
def e(s): L.append("    " + s)
def lab(s): L.append(s + ":")
def raw(s): L.append(s)
_uid = [0]
def uid(p):
    _uid[0] += 1
    return f"{p}_{_uid[0]}"
def srd(d, lo, hi, nrec):
    e(f"s_mov_b32 s{d}, s{lo}")
    e(f"s_mov_b32 s{d+1}, s{hi}")
    e(f"s_mov_b32 s{d+2}, {nrec}")
    e(f"s_mov_b32 s{d+3}, 0x00020000")
DPPM = "row_mask:0xf bank_mask:0xf"
def dpp_steps(op, regs, ctrls):
    for ctrl in ctrls:
        e("s_nop 1")
        for v in regs:
            e(f"v_{op}_f32_dpp v{v}, v{v}, v{v} {ctrl} {DPPM}")
ROWCTR = ("quad_perm:[1,0,3,2]", "quad_perm:[2,3,0,1]", "row_ror:4", "row_ror:8")
def cross_rows(op, regs, tmps):
    for sw in ("v_permlane16_swap_b32", "v_permlane32_swap_b32"):
        for v, t in zip(regs, tmps):
            e(f"v_mov_b32 v{t}, v{v}")
        e("s_nop 1")
        for v, t in zip(regs, tmps):
            e(f"{sw} v{v}, v{t}")
        e("s_nop 0")
        for v, t in zip(regs, tmps):
            e(f"v_{op}_f32 v{v}, v{v}, v{t}")
def allreduce(op, regs, tmps):
    dpp_steps(op, regs, ROWCTR)
    cross_rows(op, regs, tmps)
def swap_add(sw, pairs):
    e("s_nop 1")
    for a, b in pairs:
        e(f"{sw} v{a}, v{b}")
    e("s_nop 0")
    for a, b in pairs:
        e(f"v_add_f32 v{a}, v{a}, v{b}")
def unpack(dlo, dhi, src):
    e(f"v_lshlrev_b32 v{dlo}, 16, v{src}")
    e(f"v_and_b32 v{dhi}, 0xffff0000, v{src}")
def round_pair(a, b, t):
    e(f"v_cvt_pk_bf16_f32 v{t}, v{a}, v{b}")
    unpack(a, b, t)
def stamp(i):
    if STAMP:
        e(f"s_memrealtime s[{84+2*i}:{85+2*i}]")

def layernorm(nb, xa, o0, t0):
    f = o0
    B = range(nb)
    for b in B:
        for j in range(4):
            unpack(f + b*8 + 2*j, f + b*8 + 2*j + 1, xa + b*4 + j)
    S = [t0, t0+1][:nb]; U = [t0+2, t0+3][:nb]; Q = [t0+4, t0+5][:nb]; d = t0+6; R = [t0+7, t0+8][:nb]
    for b in B:
        e(f"v_add_f32 v{S[b]}, v{f+b*8}, v{f+b*8+1}")
        for j in range(2, 8):
            e(f"v_add_f32 v{S[b]}, v{S[b]}, v{f+b*8+j}")
    allreduce("add", S, U)
    for b in B: e(f"v_mul_f32 v{S[b]}, 0x3b000000, v{S[b]}")
    for b in B:
        e(f"v_sub_f32 v{d}, v{f+b*8}, v{S[b]}")
        e(f"v_mul_f32 v{Q[b]}, v{d}, v{d}")
        for j in range(1, 8):
            e(f"v_sub_f32 v{d}, v{f+b*8+j}, v{S[b]}")
            e(f"v_fmac_f32 v{Q[b]}, v{d}, v{d}")
    allreduce("add", Q, U)
    for b in B: e(f"v_mul_f32 v{Q[b]}, 0x3b000000, v{Q[b]}")
    for b in B:
        round_pair(S[b], Q[b], d)
        e(f"v_add_f32 v{Q[b]}, {EPS:#x}, v{Q[b]}")
        e(f"v_cvt_pk_bf16_f32 v{d}, v{Q[b]}, v{Q[b]}")
        e(f"v_lshlrev_b32 v{Q[b]}, 16, v{d}")
        e(f"v_sqrt_f32 v{Q[b]}, v{Q[b]}")
        e("s_nop 0")
        e(f"v_cvt_pk_bf16_f32 v{d}, v{Q[b]}, v{Q[b]}")
        e(f"v_lshlrev_b32 v{Q[b]}, 16, v{d}")
        e(f"v_rcp_f32 v{R[b]}, v{Q[b]}")
    e("s_nop 0")
    ta, tb, tc, td = t0+9, t0+10, t0+11, t0+12
    for b in B:
        s, q, r = S[b], Q[b], R[b]
        for j in range(0, 8, 2):
            a0, a1 = f+b*8+j, f+b*8+j+1
            e(f"v_sub_f32 v{a0}, v{a0}, v{s}")
            e(f"v_sub_f32 v{a1}, v{a1}, v{s}")
            round_pair(a0, a1, d)
            e(f"v_mul_f32 v{ta}, v{a0}, v{r}")
            e(f"v_mul_f32 v{tb}, v{a1}, v{r}")
            e(f"v_fma_f32 v{tc}, -v{ta}, v{q}, v{a0}")
            e(f"v_fma_f32 v{td}, -v{tb}, v{q}, v{a1}")
            e(f"v_fmac_f32 v{ta}, v{tc}, v{r}")
            e(f"v_fmac_f32 v{tb}, v{td}, v{r}")
            e(f"v_cvt_pk_bf16_f32 v{d}, v{ta}, v{tb}")
            e(f"v_and_b32 v{a0}, 0xffff, v{d}")
            e(f"v_lshrrev_b32 v{a1}, 16, v{d}")

def silu(dst, src, t1, t2):
    e(f"v_mul_f32 v{t1}, 0xbfb8aa3b, v{src}")
    e(f"v_exp_f32 v{t1}, v{t1}")
    e("s_nop 0")
    e(f"v_add_f32 v{t1}, 1.0, v{t1}")
    e(f"v_rcp_f32 v{t2}, v{t1}")
    e("s_nop 0")
    e(f"v_mul_f32 v{dst}, v{src}, v{t2}")

def lds_wait_ge(vaddr, off, need, vt, st, sleep=1):
    l0, l1 = uid("LW"), uid("LG")
    e("s_mov_b32 s82, 0")
    lab(l0)
    e(f"ds_read_b32 v{vt}, v{vaddr} offset:{off}")
    e("s_waitcnt lgkmcnt(0)")
    e(f"v_readfirstlane_b32 s{st}, v{vt}")
    e("s_add_u32 s82, s82, 1")
    e(f"s_cmp_ge_u32 s{st}, {need}")
    e(f"s_cbranch_scc1 {l1}")
    e(f"s_sleep {sleep}")
    e("s_cmp_lt_u32 s82, 0x800000")
    e(f"s_cbranch_scc1 {l0}")
    lab(l1)

def poll_loads(issue, regs, vt, scnt, sleep=None):
    l0, l1 = uid("PL"), uid("PG")
    e(f"s_mov_b32 s{scnt}, 0")
    lab(l0)
    issue()
    e("s_waitcnt vmcnt(0)")
    rs = list(regs)
    e(f"v_mov_b32 v{vt}, v{rs[0]}")
    i = 1
    while i < len(rs):
        if i + 1 < len(rs):
            e(f"v_max3_u32 v{vt}, v{vt}, v{rs[i]}, v{rs[i+1]}"); i += 2
        else:
            e(f"v_max_u32 v{vt}, v{vt}, v{rs[i]}"); i += 1
    e(f"v_cmp_eq_u32 vcc, -1, v{vt}")
    e(f"s_add_u32 s{scnt}, s{scnt}, 1")
    e("s_cmp_eq_u64 vcc, 0")
    e(f"s_cbranch_scc1 {l1}")
    if sleep is not None: e(f"s_sleep {sleep}")
    e(f"s_cmp_lt_u32 s{scnt}, {SPIN_MAX}")
    e(f"s_cbranch_scc1 {l0}")
    lab(l1)

def wait_all_counters(vt, va, scnt):
    l0, l1 = uid("WC"), uid("WG")
    e(f"v_and_b32 v{va}, 3, v1")
    e(f"v_lshlrev_b32 v{va}, 6, v{va}")
    e(f"v_and_b32 v{vt}, 12, v1")
    e(f"v_add_u32 v{va}, v{va}, v{vt}")
    e(f"s_mov_b32 s{scnt}, 0")
    lab(l0)
    e(f"buffer_load_dword v{vt}, v{va}, s[40:43], 0 offen sc1")
    e("s_waitcnt vmcnt(0)")
    e(f"v_cmp_gt_u32 vcc, 16, v{vt}")
    e(f"s_add_u32 s{scnt}, s{scnt}, 1")
    e("s_cmp_eq_u64 vcc, 0")
    e(f"s_cbranch_scc1 {l1}")
    e("s_sleep 32")
    e(f"s_cmp_lt_u32 s{scnt}, {SPIN_MAX}")
    e(f"s_cbranch_scc1 {l0}")
    lab(l1)

def red16(acc):
    e("s_nop 3")
    swap_add("v_permlane32_swap_b32", [(acc+j, acc+8+j) for j in range(8)])
    swap_add("v_permlane16_swap_b32", [(acc+j, acc+4+j) for j in range(4)])
    dpp_steps("add", [acc+j for j in range(4)], ("row_ror:8",))

def red16_addr(dst, tmp, cq):
    e(f"v_lshrrev_b32 v{dst}, 1, v3")
    e(f"v_lshlrev_b32 v{dst}, 8, v{dst}")
    e(f"v_and_b32 v{tmp}, 1, v3")
    e(f"v_lshl_add_u32 v{dst}, v{tmp}, 4, v{dst}")
    e(f"v_lshl_add_u32 v{dst}, v{cq}, 5, v{dst}")

KNAME = NAME + "_kernel"
raw(f".globl {KNAME}"); raw(".p2align 8"); raw(f".type {KNAME},@function"); lab(KNAME)
stamp(0)
e("s_cmp_ge_u32 s2, 256")
e("s_cbranch_scc1 DONE")
e("s_load_dwordx16 s[4:19], s[0:1], 0")
e("s_load_dwordx8 s[20:27], s[0:1], 64")
e("v_lshrrev_b32 v1, 6, v0")
e("s_nop 0")
e("v_readfirstlane_b32 s28, v1")
e("v_and_b32 v1, 63, v0")
if MAP:
    e("s_lshr_b32 s29, s2, 4")
    e("s_and_b32 s30, s2, 15")
else:
    e("s_and_b32 s29, s2, 15")
    e("s_lshr_b32 s30, s2, 4")
e("s_lshr_b32 s31, s29, 3")
e("s_and_b32 s32, s29, 7")
e(f"s_lshl_b32 s34, s2, {RSH}")
e("s_lshr_b32 s35, s2, 5")
e("v_and_b32 v2, 15, v1")
e("v_lshrrev_b32 v3, 4, v1")
e("s_cmp_ge_u32 s28, 4")
e("s_waitcnt lgkmcnt(0)")
srd(36, 26, 27, WS_USED if not STAMP else 0x400000)
srd(44, 4, 5, 2048)
e(f"s_mov_b32 s60, {LOG2E:#x}")
e(f"s_mov_b32 s61, {SCALE:#x}")
e("s_cbranch_scc1 ROLE_HI")
if PURE == 1: e("s_branch DONE")
if PURE == 3:
    srd(48, 10, 11, 512*4096*2)
    e("v_lshrrev_b32 v5, 3, v0"); e("v_and_b32 v6, 7, v0")
    e("v_lshlrev_b32 v7, 15, v5"); e("v_lshl_add_u32 v7, v6, 4, v7")
    e("s_lshl_b32 s62, s31, 4"); e("s_add_u32 s62, s62, s30")
    e("s_and_b32 s63, s62, 7"); e("s_lshl_b32 s63, s63, 7")
    e("s_lshr_b32 s62, s62, 3"); e("s_lshl_b32 s62, s62, 20")
    e("s_add_u32 s62, s62, s63"); e("s_lshl_b32 s63, s32, 10"); e("s_add_u32 s62, s62, s63")
    for i in range(4):
        if i: e("s_add_u32 s62, s62, 8192")
        e(f"buffer_load_dwordx4 v[{32+4*i}:{35+4*i}], v7, s[48:51], s62 offen nt")
    e("s_waitcnt vmcnt(0)")
    stamp(1)
    e("s_branch DONE")

srd(48, 10, 11, 512*4096*2)
e("v_lshlrev_b32 v4, 4, v1")
e("s_lshl_b32 s33, s31, 10")
e("buffer_load_dwordx4 v[8:11], v4, s[44:47], s33 offen")
e("v_lshrrev_b32 v5, 2, v0")
e("v_and_b32 v6, 3, v0")
e("v_lshlrev_b32 v7, 16, v5")
e("v_lshl_add_u32 v7, v6, 4, v7")
e("s_lshl_b32 s62, s32, 10")
e("s_lshl_b32 s63, s30, 6")
e("s_add_u32 s62, s62, s63")
WQNT = os.environ.get("WQNT", " nt")
for i in range(8):
    if i: e(f"s_add_u32 s62, s62, 8192")
    e(f"buffer_load_dwordx4 v[{32+4*i}:{35+4*i}], v7, s[48:51], s62 offen{WQNT}")
if PURE == 2:
    e("s_waitcnt vmcnt(0)")
    stamp(1)
    e("s_branch DONE")
e("s_barrier")
e(f"v_mov_b32 v14, {LB}")
e("v_mov_b32 v15, 1")
e("s_waitcnt vmcnt(8)")
layernorm(1, 8, 64, 80)
e("v_lshlrev_b32 v12, 5, v1")
e(f"v_add_u32 v12, {L_XN}, v12")
e("ds_write_b128 v12, v[64:67]")
e("ds_write_b128 v12, v[68:71] offset:16")
e("v_lshlrev_b32 v13, 5, v5")
e(f"v_add_u32 v13, {L_XN}, v13")
e("s_waitcnt lgkmcnt(0)")
e("ds_read_b128 v[64:67], v13")
e("ds_read_b128 v[68:71], v13 offset:16")
for i in range(8):
    e(f"v_mov_b32 v{96+i}, 0")
e("s_waitcnt lgkmcnt(0)")
for i in range(8):
    e(f"v_lshlrev_b32 v{72+i}, 16, v{64+i}")
e("s_waitcnt vmcnt(0)")
for i in range(8):
    for j in range(4):
        w = 32 + 4*i + j
        e(f"v_dot2_f32_bf16 v{96+2*j}, v{w}, v{64+i}, v{96+2*j}")
        e(f"v_dot2_f32_bf16 v{97+2*j}, v{w}, v{72+i}, v{97+2*j}")
e("s_nop 3")
swap_add("v_permlane32_swap_b32", [(96+j, 100+j) for j in range(4)])
swap_add("v_permlane16_swap_b32", [(96+j, 98+j) for j in range(2)])
dpp_steps("add", [96, 97], ("row_ror:4", "row_ror:8"))
e("v_lshlrev_b32 v12, 5, v6")
e("v_lshl_add_u32 v12, v3, 3, v12")
e("s_lshl_b32 s33, s28, 7")
e(f"s_add_u32 s33, s33, {L_QP}")
e("v_add_u32 v12, s33, v12")
e("v_and_b32 v13, 12, v1")
e("v_cmp_eq_u32 vcc, 0, v13")
e("s_and_saveexec_b64 s[64:65], vcc")
e("ds_write_b64 v12, v[96:97]")
e("s_mov_b64 exec, s[64:65]")
e("s_waitcnt lgkmcnt(0)")
e("v_cmp_eq_u32 vcc, 0, v1")
e("s_and_saveexec_b64 s[64:65], vcc")
e(f"ds_add_u32 v14, v15 offset:{F_QCNT-LB}")
e("s_mov_b64 exec, s[64:65]")
lab("C_pre")
e("s_lshl_b32 s33, s28, 14")
e("v_and_b32 v145, 7, v2")
e("v_lshlrev_b32 v145, 1, v145")
e("v_xor_b32 v145, v3, v145")
e("v_lshlrev_b32 v145, 4, v145")
e("v_lshl_add_u32 v145, v2, 8, v145")
e("v_add_u32 v160, s33, v145")
for s in range(1, 4):
    e(f"v_xor_b32 v{160+s}, {s*64}, v160")
for s in range(4):
    e(f"v_add_u32 v{164+s}, 0x10000, v{160+s}")
e("v_bfe_u32 v145, v1, 2, 2")
e("v_lshl_add_u32 v145, v3, 2, v145")
e("v_and_b32 v146, 7, v145")
e("v_lshlrev_b32 v146, 1, v146")
e("v_bfe_u32 v147, v1, 1, 1")
e("v_xor_b32 v146, v146, v147")
e("v_lshlrev_b32 v146, 4, v146")
e("v_lshl_add_u32 v146, v145, 8, v146")
e("v_and_b32 v147, 1, v1")
e("v_lshl_add_u32 v146, v147, 3, v146")
e("v_add_u32 v146, 8192, v146")
e("v_add_u32 v168, s33, v146")
for db in range(1, 8):
    e(f"v_xor_b32 v{168+db}, {db*32}, v168")
for db in range(8):
    e(f"v_add_u32 v{176+db}, 0x10000, v{168+db}")
for i in range(32):
    e(f"v_mov_b32 v{96+i}, 0")
e("v_mov_b32 v140, 0xff800000")
e("v_mov_b32 v141, 0")
e("s_lshl_b32 s66, s28, 1")
e("s_add_u32 s66, s66, 1")
e("s_mov_b32 s67, 0")
e("s_lshl_b32 s33, s28, 2")
e(f"s_add_u32 s33, s33, {F_CONS}")
e("v_mov_b32 v150, s33")
e("s_mov_b32 s68, 0")
KF = (32, 184); VF = (64, 216)
def c_load(p):
    kf, vf = KF[p], VF[p]
    sk = uid("CK"); l0 = uid("CW")
    e("s_cmp_ge_u32 s68, s66")
    e(f"s_cbranch_scc1 {sk}")
    e("s_mov_b32 s82, 0")
    lab(l0)
    e(f"ds_read_b64 v[144:145], v14 offset:{F_LANDED-LB}")
    e("s_waitcnt lgkmcnt(0)")
    e("v_readfirstlane_b32 s68, v144")
    e("v_readfirstlane_b32 s33, v145")
    e("s_add_u32 s82, s82, 1")
    e("s_cmp_ge_u32 s68, s66")
    e(f"s_cbranch_scc1 {sk}")
    e("s_sub_u32 s33, s33, 1")
    e("s_cmp_lt_u32 s33, s66")
    e("s_cbranch_scc1 C_done")
    e("s_sleep 1")
    e("s_cmp_lt_u32 s82, 0x800000")
    e(f"s_cbranch_scc1 {l0}")
    lab(sk)
    for t in range(2):
        for s in range(4):
            r = kf + (t*4+s)*4
            e(f"ds_read_b128 v[{r}:{r+3}], v{160+4*p+s} offset:{t*4096}")
    e("s_add_u32 s66, s66, 1")
    sk = uid("CV")
    e("s_cmp_ge_u32 s68, s66")
    e(f"s_cbranch_scc1 {sk}")
    lds_wait_ge(14, F_LANDED-LB, "s66", 144, 68, sleep=1)
    lab(sk)
    e("s_waitcnt lgkmcnt(4)")
    for db in range(8):
        for t in range(2):
            r = vf + db*4 + t*2
            e(f"ds_read_b64_tr_b16 v[{r}:{r+1}], v{168+8*p+db} offset:{t*4096}")
        if db in (2, 5):
            e("s_waitcnt lgkmcnt(4)")
    e("s_add_u32 s67, s67, 1")
    e("v_mov_b32 v151, s67")
    e("s_add_u32 s66, s66, 7")
    e("s_waitcnt lgkmcnt(0)")
    e("ds_write_b32 v150, v151")
def c_compute(p):
    if ABL >= 2: return
    kf, vf = KF[p], VF[p]
    for s in range(4):
        for t in range(2):
            r = kf + (t*4+s)*4
            d = 128 + 4*t
            c = "0" if s == 0 else f"v[{d}:{d+3}]"
            e(f"v_mfma_f32_16x16x32_bf16 v[{d}:{d+3}], v[{r}:{r+3}], v[{16+4*s}:{19+4*s}], {c}")
    e("s_nop 7")
    e("s_nop 1")
    S = list(range(128, 136))
    for j in range(0, 8, 2):
        round_pair(S[j], S[j+1], 152 + j//2)
    for j in range(8):
        e(f"v_mul_f32 v{S[j]}, s61, v{S[j]}")
    for j in range(0, 8, 2):
        round_pair(S[j], S[j+1], 152 + j//2)
    e("v_max3_f32 v144, v128, v129, v130")
    e("v_max3_f32 v145, v131, v132, v133")
    e("v_max3_f32 v144, v144, v134, v135")
    e("v_max_f32 v144, v144, v145")
    cross_rows("max", [144], [145])
    e("v_max_f32 v144, v144, v140")
    e("v_sub_f32 v145, v140, v144")
    e("v_mul_f32 v145, s60, v145")
    e("v_exp_f32 v145, v145")
    e("v_mov_b32 v140, v144")
    e("v_mul_f32 v146, s60, v144")
    for j in range(8):
        e(f"v_fma_f32 v{S[j]}, v{S[j]}, s60, -v146")
    for j in range(8):
        e(f"v_exp_f32 v{S[j]}, v{S[j]}")
    e("v_mul_f32 v141, v141, v145")
    for j in range(8):
        e(f"v_add_f32 v141, v141, v{S[j]}")
    for j in range(4):
        e(f"v_cvt_pk_bf16_f32 v{136+j}, v{S[2*j]}, v{S[2*j+1]}")
    for i in range(32):
        e(f"v_mul_f32 v{96+i}, v{96+i}, v145")
    e("s_nop 1")
    for db in range(8):
        e(f"v_mfma_f32_16x16x32_bf16 v[{96+4*db}:{99+4*db}], v[{vf+4*db}:{vf+4*db+3}], v[136:139], v[{96+4*db}:{99+4*db}]")
    e("s_nop 7")
    e("s_nop 1")
c_load(0)
c_load(1)
lds_wait_ge(14, F_QRDY-LB, 1, 144, 33, sleep=1)
stamp(2)
for i in range(16):
    e(f"v_mov_b32 v{16+i}, 0")
e("v_lshlrev_b32 v12, 8, v2")
e("v_lshl_add_u32 v12, v3, 4, v12")
e(f"v_add_u32 v12, {L_Q}, v12")
e("v_cmp_gt_u32 vcc, 4, v2")
e("s_and_saveexec_b64 s[64:65], vcc")
for s in range(4):
    e(f"ds_read_b128 v[{16+4*s}:{19+4*s}], v12 offset:{s*64}")
e("s_mov_b64 exec, s[64:65]")
e("s_waitcnt lgkmcnt(0)")
c_compute(0)
e("s_branch C_mid")
lab("C_loop")
c_load(0)
c_compute(0)
c_load(1)
lab("C_mid")
c_compute(1)
e("s_branch C_loop")
lab("C_done")
stamp(3)
cross_rows("add", [141], [145])
e(f"s_mul_i32 s33, s28, 2304")
e(f"s_add_u32 s33, s33, {L_CMB}")
e("v_lshlrev_b32 v144, 9, v2")
e("v_lshl_add_u32 v144, v3, 4, v144")
e("v_add_u32 v144, s33, v144")
e("v_lshlrev_b32 v145, 3, v2")
e("v_add_u32 v145, s33, v145")
e("v_cmp_gt_u32 vcc, 4, v2")
e("s_and_saveexec_b64 s[64:65], vcc")
for db in range(8):
    e(f"ds_write_b128 v144, v[{96+4*db}:{99+4*db}] offset:{db*64}")
e("ds_write_b64 v145, v[140:141] offset:2048")
e("s_mov_b64 exec, s[64:65]")
e("s_waitcnt lgkmcnt(0)")
e("s_barrier")
e("s_lshl_b32 s33, s28, 9")
e(f"s_add_u32 s33, s33, {L_CMB}")
e("v_lshlrev_b32 v144, 3, v1")
e("v_add_u32 v146, s33, v144")
e("s_lshl_b32 s33, s28, 3")
e(f"s_add_u32 s33, s33, {L_CMB + 2048}")
e("v_mov_b32 v145, s33")
for w in range(4):
    e(f"ds_read_b64 v[{32+2*w}:{33+2*w}], v146 offset:{w*2304}")
    e(f"ds_read_b64 v[{40+2*w}:{41+2*w}], v145 offset:{w*2304}")
e("s_waitcnt lgkmcnt(0)")
e("v_max3_f32 v48, v40, v42, v44")
e("v_max_f32 v48, v48, v46")
for w in range(4):
    e(f"v_sub_f32 v{50+w}, v{40+2*w}, v48")
    e(f"v_mul_f32 v{50+w}, s60, v{50+w}")
    e(f"v_exp_f32 v{50+w}, v{50+w}")
e("s_nop 0")
e("v_mul_f32 v49, v41, v50")
e("v_mul_f32 v54, v32, v50")
e("v_mul_f32 v55, v33, v50")
for w in range(1, 4):
    e(f"v_fmac_f32 v49, v{41+2*w}, v{50+w}")
    e(f"v_fmac_f32 v54, v{32+2*w}, v{50+w}")
    e(f"v_fmac_f32 v55, v{33+2*w}, v{50+w}")
e("s_lshl_b32 s33, s28, 9")
e("s_add_u32 s33, s33, s34")
e(f"buffer_store_dwordx2 v[54:55], v144, s[36:39], s33 offen offset:{R_O} sc1")
e("s_lshl_b32 s33, s28, 3")
e("s_add_u32 s33, s33, s34")
e("v_cmp_eq_u32 vcc, 0, v1")
e("s_and_saveexec_b64 s[64:65], vcc")
e(f"buffer_store_dwordx2 v[48:49], v144, s[36:39], s33 offen offset:{R_ML} sc1")
e("s_mov_b64 exec, s[64:65]")
stamp(4)
e("s_and_b32 s62, s2, 3")
e("s_lshr_b32 s63, s28, 1")
e("s_lshl_b32 s63, s63, 3")
e("s_bfe_u32 s33, s2, 0x30002")
e("s_add_u32 s63, s63, s33")
e(f"s_lshl_b32 s63, s63, {RSH+GSH}")
e("s_lshl_b32 s69, s62, 9")
e("s_add_u32 s69, s69, s63")
e("s_lshl_b32 s70, s62, 3")
e("s_add_u32 s70, s70, s63")
e("v_and_b32 v4, 127, v0")
e("v_lshlrev_b32 v4, 2, v4")
e(f"v_lshlrev_b32 v5, {RSH+MSH}, v2")
for sp in range(1, 16):
    e(f"v_add_u32 v{200+sp}, {sp << (RSH+MSH)}, v4")
def t1_issue():
    e(f"buffer_load_dwordx2 v[6:7], v5, s[36:39], s70 offen offset:{R_ML} sc1")
    for sp in range(16):
        e(f"buffer_load_dword v{8+sp}, v{4 if sp == 0 else 200+sp}, s[36:39], s69 offen offset:{R_O} sc1")
poll_loads(t1_issue, [6, 7] + list(range(8, 24)), 28, 66)
stamp(5)
e("v_mov_b32 v28, v6")
dpp_steps("max", [28], ROWCTR)
e("v_sub_f32 v29, v6, v28")
e("v_mul_f32 v29, s60, v29")
e("v_exp_f32 v29, v29")
e("s_nop 0")
e("v_mul_f32 v30, v29, v7")
dpp_steps("add", [30], ROWCTR)
e("v_rcp_f32 v31, v30")
e("s_nop 1")
for sp in range(16):
    e(f"v_readlane_b32 s{66+sp}, v29, {sp}")
e("s_nop 1")
e("v_mul_f32 v27, s66, v8")
for sp in range(1, 16):
    e(f"v_fmac_f32 v27, s{66+sp}, v{8+sp}")
e("v_mul_f32 v8, v27, v31")
e("v_fma_f32 v9, -v8, v30, v27")
e("v_fmac_f32 v8, v9, v31")
e("v_cvt_pk_bf16_f32 v8, v8, v8")
e("v_and_b32 v8, 0xffff, v8")
e("v_lshlrev_b32 v9, 2, v0")
e(f"v_add_u32 v9, {L_OL}, v9")
e("ds_write_b32 v9, v8")
e("s_waitcnt lgkmcnt(0)")
e("s_barrier")
e("s_barrier")
e("s_and_b32 s33, s2, 31")
e("s_cmp_lg_u32 s33, 28")
e("s_cbranch_scc1 DONE")
e("s_cmp_ge_u32 s28, 2")
e("s_cbranch_scc1 DONE")
e("v_lshlrev_b32 v4, 2, v0")
e(f"s_lshl_b32 s33, s35, {RSH+5}")
for hh in range(1, 32):
    e(f"v_add_u32 v{200+hh}, {hh << RSH}, v4")
e("s_lshl_b32 s62, s35, 7")
e("v_lshlrev_b32 v5, 1, v1")
e("s_lshl_b32 s63, s28, 10")
e("s_add_u32 s62, s62, s63")
e("buffer_load_ushort v6, v5, s[44:47], s62 offen")
e(f"v_add_u32 v7, {L_G}, v4")
e("ds_read_b32 v100, v7")
def t2_issue():
    for hh in range(32):
        e(f"buffer_load_dword v{64+hh}, v{4 if hh == 0 else 200+hh}, s[36:39], s33 offen offset:{R_S} sc1")
poll_loads(t2_issue, list(range(64, 96)), 28, 66)
for st in (16, 8, 4, 2, 1):
    for k in range(st):
        e(f"v_add_f32 v{64+k}, v{64+k}, v{64+k+st}")
e("s_waitcnt lgkmcnt(0)")
e("v_cvt_pk_bf16_f32 v64, v64, v64")
e("v_lshlrev_b32 v64, 16, v64")
e("v_mul_f32 v67, v64, v100")
e("v_cvt_pk_bf16_f32 v67, v67, v67")
e("v_lshlrev_b32 v67, 16, v67")
e("v_lshlrev_b32 v6, 16, v6")
e("v_add_f32 v67, v6, v67")
e("v_cvt_pk_bf16_f32 v67, v67, v67")
srd(48, 22, 23, 2048)
e("buffer_store_short v67, v5, s[48:51], s62 offen")
stamp(6)
e("s_branch DONE")

lab("ROLE_HI")
srd(48, 12, 13, 4096*512*2)
e("v_subrev_u32 v4, 256, v0")
e("v_lshrrev_b32 v5, 3, v4")
e("v_and_b32 v6, 7, v4")
e("v_lshlrev_b32 v7, 12, v5")
e("v_lshl_add_u32 v7, v6, 4, v7")
e("s_and_b32 s62, s2, 31")
e("s_lshl_b32 s62, s62, 17")
e("s_lshl_b32 s63, s35, 7")
e("s_add_u32 s62, s62, s63")
e(f"v_mov_b32 v24, {LB}")
e("s_cmp_lg_u32 s28, 4")
e("s_cbranch_scc1 ROLE_H")
def wo_loads():
    for i in range(4):
        if ABL >= 1:
            e(f"buffer_load_dwordx4 v[{32+4*i}:{35+4*i}], v7, s[44:47], 0 offen offset:4000")
            continue
        e(f"buffer_load_dwordx4 v[{32+4*i}:{35+4*i}], v7, s[48:51], s62 offen offset:{i*1024} nt")
e("s_lshl_b32 s64, s29, 23")
e("s_lshl_b32 s75, s30, 19")
e("s_add_u32 s52, s6, s64"); e("s_addc_u32 s53, s7, 0"); e("s_mov_b32 s54, 0x800000"); e("s_mov_b32 s55, 0x00020000")
e("s_add_u32 s56, s8, s64"); e("s_addc_u32 s57, s9, 0"); e("s_mov_b32 s58, 0x800000"); e("s_mov_b32 s59, 0x00020000")
e("v_lshlrev_b32 v8, 1, v3")
e("v_xor_b32 v8, v2, v8")
e("v_lshlrev_b32 v8, 4, v8")
e("v_lshl_add_u32 v8, v3, 8, v8")
e("v_xor_b32 v9, 0x80, v8")
e(f"s_mul_i32 s66, s2, {ROTM}")
e("s_and_b32 s66, s66, 63")
e("s_lshl_b32 s76, s66, 13")
e("s_add_u32 s66, s76, s75")
e("s_mov_b32 s67, 0")
def dma(srdb):
    for half in range(2):
        if half:
            e("s_add_u32 m0, s67, 4096")
            e("s_add_u32 s68, s66, 4096")
        else:
            e("s_mov_b32 m0, s67")
            e("s_nop 0")
        so = 68 if half else 66
        for n in range(4):
            e(f"buffer_load_dwordx4 v{9 if (n & 1) else 8}, s[{srdb}:{srdb+3}], s{so} offen offset:{n*1024} nt lds")
    e("s_add_u32 s67, s67, 8192")
    e("s_and_b32 s67, s67, 0x1ffff")
def adv():
    e("s_add_u32 s76, s76, 8192")
    e("s_and_b32 s76, s76, 0x7ffff")
    e("s_add_u32 s66, s76, s75")
assert D % 2 == 0
for n in range(D):
    dma(52 if n % 2 == 0 else 56)
    if n % 2: adv()
e("v_lshlrev_b32 v15, 2, v1")
e(f"v_add_u32 v15, {LB}, v15")
e("v_mov_b32 v16, 0")
e("ds_write_b32 v15, v16")
e("s_waitcnt lgkmcnt(0)")
e("s_barrier")
e("s_mov_b32 s69, 0")
e(f"s_mov_b32 s70, {D//2}")
lab("L_loop")
for kv in range(2):
    e(f"s_waitcnt vmcnt({(D-1)*8})")
    e("s_add_u32 s69, s69, 1")
    e("v_mov_b32 v16, s69")
    e(f"ds_write_b32 v24, v16 offset:{F_LANDED-LB}")
    if kv == 0 and not PURE:
        sk = uid("LF")
        e("s_cmp_lt_u32 s70, 8")
        e(f"s_cbranch_scc1 {sk}")
        e("s_and_b32 s71, s70, 3")
        e("s_lshl_b32 s71, s71, 2")
        e(f"s_add_u32 s71, s71, {F_CONS}")
        e("v_mov_b32 v17, s71")
        e("s_lshr_b32 s72, s70, 2")
        e("s_sub_u32 s72, s72, 1")
        lds_wait_ge(17, 0, "s72", 18, 73, sleep=1)
        lab(sk)
    dma(52 if kv == 0 else 56)
adv()
e("s_add_u32 s70, s70, 1")
if STAMP:
    for si, cnt in ((1, 8), (2, 16), (4, 32), (5, 64), (6, 96)):
        sk = uid("LS")
        e(f"s_cmp_lg_u32 s69, {cnt}")
        e(f"s_cbranch_scc1 {sk}")
        stamp(si)
        lab(sk)
e(f"s_cmp_lt_u32 s70, {64 if PURE else SST}")
e("s_cbranch_scc1 L_loop")
if not PURE:
    e(f"s_sub_u32 s77, s70, {SST - 1}")
    lds_wait_ge(24, F_TQN-LB, "s77", 18, 73, sleep=1)
    e("s_lshl_b32 s71, s77, 2")
    e(f"s_add_u32 s71, s71, {L_TQ - 4}")
    e("v_mov_b32 v17, s71")
    e("ds_read_b32 v18, v17")
    e("v_mov_b32 v16, s77")
    e(f"ds_write_b32 v24, v16 offset:{F_LIDX-LB}")
    e("s_waitcnt lgkmcnt(0)")
    e("v_readfirstlane_b32 s71, v18")
    e("s_nop 0")
    e(f"s_cmp_ge_u32 s71, {POOL}")
    e("s_cbranch_scc1 L_done")
    e("s_and_b32 s72, s71, 15")
    e("s_lshr_b32 s71, s71, 4")
    e(f"s_lshl_b32 s73, s29, {GSH}")
    e(f"s_lshl_b32 s74, s72, {MSH}")
    e("s_add_u32 s73, s73, s74")
    e(f"s_mul_i32 s73, s73, {ROTM}")
    e("s_add_u32 s73, s73, s71")
    e(f"s_add_u32 s73, s73, {SST}")
    e("s_and_b32 s73, s73, 63")
    e("s_lshl_b32 s73, s73, 13")
    e("s_lshl_b32 s72, s72, 19")
    e("s_add_u32 s66, s72, s73")
    e("s_branch L_loop")
    lab("L_done")
    e("s_lshl_b32 s71, s70, 1")
    e("v_mov_b32 v16, s71")
    e(f"ds_write_b32 v24, v16 offset:{F_TOTAL-LB}")
wo_loads()
for j in range(D):
    e(f"s_waitcnt vmcnt({(D-1-j)*8 + 4})")
    e("s_add_u32 s69, s69, 1")
    e("v_mov_b32 v16, s69")
    e(f"ds_write_b32 v24, v16 offset:{F_LANDED-LB}")
e("s_waitcnt lgkmcnt(0)")
stamp(3)
e("s_branch DONE" if PURE else "s_branch HI_TAIL")

lab("ROLE_H")
if PURE: e("s_branch DONE")
e("s_cmp_lg_u32 s28, 5")
e("s_cbranch_scc1 ROLE_H67")
e("v_lshlrev_b32 v10, 4, v1")
e("s_lshl_b32 s71, s2, 10")
e(f"s_add_u32 s71, s71, {WS_QI}")
e("v_mov_b32 v16, -1"); e("v_mov_b32 v17, -1"); e("v_mov_b32 v18, -1"); e("v_mov_b32 v19, -1")
e("buffer_store_dwordx4 v[16:19], v10, s[36:39], s71 offen sc1")
e("s_barrier")
e("v_and_b32 v13, 3, v1")
e("v_lshlrev_b32 v13, 4, v13")
e("v_lshrrev_b32 v11, 2, v1")
e(f"v_lshlrev_b32 v11, {10+MSH}, v11")
e("v_add_u32 v11, v11, v13")
e(f"s_lshl_b32 s72, s29, {10+GSH}")
e("s_lshl_b32 s73, s30, 6")
e("s_add_u32 s72, s72, s73")
e(f"s_add_u32 s72, s72, {WS_QI}")
e("v_mov_b32 v15, 1")
lds_wait_ge(24, F_QCNT-LB, 4, 16, 33, sleep=0)
e("v_lshlrev_b32 v12, 3, v2")
e(f"v_add_u32 v12, {L_QP}, v12")
for w in range(4):
    e(f"ds_read_b64 v[{16+2*w}:{17+2*w}], v12 offset:{w*128}")
e("s_waitcnt lgkmcnt(0)")
e("v_add_f32 v16, v16, v18"); e("v_add_f32 v17, v17, v19")
e("v_add_f32 v20, v20, v22"); e("v_add_f32 v21, v21, v23")
e("v_add_f32 v16, v16, v20"); e("v_add_f32 v17, v17, v21")
e("v_cvt_pk_bf16_f32 v16, v16, v17")
e("v_lshlrev_b32 v12, 2, v2")
e(f"v_add_u32 v12, {L_Q}, v12")
e("ds_write_b32 v12, v16")
e(f"v_add_u32 v12, {L_Q}, v13")
e("s_waitcnt lgkmcnt(0)")
e("ds_read_b128 v[20:23], v12")
e("s_waitcnt vmcnt(0) lgkmcnt(0)")
e("buffer_store_dwordx4 v[20:23], v11, s[36:39], s72 offen sc1")
stamp(4)
poll_loads(lambda: e("buffer_load_dwordx4 v[16:19], v10, s[36:39], s71 offen sc1"), [16,17,18,19], 26, 66)
e(f"v_add_u32 v13, {L_Q}, v10")
e("ds_write_b128 v13, v[16:19]")
e("s_waitcnt lgkmcnt(0)")
e(f"ds_write_b32 v24, v15 offset:{F_QRDY-LB}")
e("buffer_store_dwordx4 v[20:23], v11, s[36:39], s72 offen sc1")
e("s_waitcnt lgkmcnt(0)")
srd(40, 24, 25, 256)
e("v_mov_b32 v8, -1"); e("v_mov_b32 v9, -1"); e("v_mov_b32 v10, -1"); e("v_mov_b32 v11, -1")
e("v_lshlrev_b32 v12, 4, v1")
e("s_add_u32 s33, s34, 4096")
for i in range(4):
    e(f"buffer_store_dwordx4 v[8:11], v12, s[36:39], s34 offen offset:{i*1024} sc1")
e("buffer_store_dwordx4 v[8:11], v12, s[36:39], s33 offen sc1")
e("s_lshl_b32 s78, s29, 8")
e(f"s_add_u32 s78, s78, {WS_TK}")
e("v_mov_b32 v27, 0")
e("s_cmp_lg_u32 s30, 0")
e("s_cbranch_scc1 H5_notlead")
e("buffer_store_dword v27, v27, s[36:39], s78 offen sc1")
lab("H5_notlead")
e("s_and_b32 s83, s29, 3")
e("s_lshl_b32 s83, s83, 6")
e("s_and_b32 s33, s29, 12")
e("s_add_u32 s83, s83, s33")
e("v_mov_b32 v13, s83")
e("v_mov_b32 v14, 1")
e("s_waitcnt vmcnt(0)")
e("v_cmp_eq_u32 vcc, 0, v1")
e("s_and_saveexec_b64 s[64:65], vcc")
e("buffer_atomic_add v14, v13, s[40:43], 0 offen")
e("s_mov_b64 exec, s[64:65]")
wo_loads()
stamp(1)
lds_wait_ge(24, F_LANDED-LB, 32, 25, 33, sleep=8)
wait_all_counters(25, 26, 66)
e("v_mov_b32 v25, 1")
e(f"ds_write_b32 v24, v25 offset:{F_ALLC-LB}")
e("s_waitcnt lgkmcnt(0)")
stamp(2)
lds_wait_ge(24, F_LANDED-LB, 2*(SST-8), 25, 33, sleep=8)
e("s_mov_b32 s79, 0")
e("v_lshlrev_b32 v28, 2, v1")
e(f"v_add_u32 v28, {L_TQ}, v28")
e("v_cmp_gt_u32 vcc, 2, v1")
e("s_and_saveexec_b64 s[64:65], vcc")
lab("A_loop")
e("v_mov_b32 v29, 1")
e("buffer_atomic_add v29, v27, s[36:39], s78 offen sc0")
e("s_waitcnt vmcnt(0)")
e(f"v_mov_b32_dpp v30, v29 quad_perm:[1,0,3,2] {DPPM}")
e("s_nop 1")
e("v_min_u32 v31, v29, v30")
e("v_max_u32 v30, v29, v30")
e("v_cmp_eq_u32 vcc, 0, v1")
e("s_nop 1")
e("v_cndmask_b32 v29, v30, v31, vcc")
e("ds_write_b32 v28, v29")
e("v_add_u32 v28, 8, v28")
e("s_add_u32 s79, s79, 2")
e("v_mov_b32 v31, s79")
e("s_waitcnt lgkmcnt(0)")
e(f"ds_write_b32 v24, v31 offset:{F_TQN-LB}")
e("v_readfirstlane_b32 s33, v30")
e("s_nop 0")
e(f"s_cmp_ge_u32 s33, {POOL}")
e("s_cbranch_scc1 A_done")
e("s_cmp_ge_u32 s79, 46")
e("s_cbranch_scc1 A_done2")
e(f"s_sub_u32 s80, s79, {LA}")
e(f"s_cmp_le_u32 s79, {LA}")
e("s_cbranch_scc1 A_loop")
lds_wait_ge(24, F_LIDX-LB, "s80", 25, 33, sleep=1)
e("s_branch A_loop")
lab("A_done2")
e("v_mov_b32 v29, -1")
e("ds_write_b32 v28, v29")
e("s_add_u32 s79, s79, 2")
e("v_mov_b32 v31, s79")
e("s_waitcnt lgkmcnt(0)")
e(f"ds_write_b32 v24, v31 offset:{F_TQN-LB}")
lab("A_done")
e("s_waitcnt lgkmcnt(0)")
e("s_mov_b64 exec, s[64:65]")
stamp(3)
e("s_branch HI_TAIL")

lab("ROLE_H67")
e("s_barrier")
if ABL >= 1: e("s_branch HI_TAIL")
lds_wait_ge(24, F_QRDY-LB, 1, 25, 33, sleep=4)
wo_loads()
e("v_lshrrev_b32 v8, 3, v1")
e("v_and_b32 v9, 7, v1")
e("s_sub_u32 s74, s28, 6")
e("s_cmp_ge_u32 s2, 224")
e("s_cbranch_scc1 H67_noffn1")
e("s_cmp_eq_u32 s28, 6")
e("s_cselect_b32 s52, s16, s18")
e("s_cselect_b32 s53, s17, s19")
e(f"s_mov_b32 s54, {512*1792*2}")
e("s_mov_b32 s55, 0x00020000")
e("v_lshlrev_b32 v12, 4, v1")
e("buffer_load_dwordx4 v[16:19], v12, s[44:47], 0 offen")
e("buffer_load_dwordx4 v[20:23], v12, s[44:47], 0 offen offset:1024")
e("v_mul_u32_u24 v10, 28672, v8")
e("v_lshl_add_u32 v10, v9, 4, v10")
e("s_lshr_b32 s64, s2, 3")
e("s_lshl_b32 s64, s64, 7")
e("s_and_b32 s81, s2, 7")
e("s_mul_i32 s65, s81, 229376")
e("s_add_u32 s66, s64, s65")
for i in range(8):
    if i: e("s_add_u32 s66, s66, 3584")
    e(f"buffer_load_dwordx4 v[{64+4*i}:{67+4*i}], v10, s[52:55], s66 offen nt")
e("s_waitcnt vmcnt(8)")
layernorm(2, 16, 128, 144)
e("s_lshl_b32 s64, s81, 3")
e("v_add_u32 v12, s64, v8")
e("v_lshlrev_b32 v12, 2, v12")
for i in range(16):
    e(f"ds_bpermute_b32 v{160+i}, v12, v{128+i}")
    if i == 7: e("s_waitcnt lgkmcnt(4)")
for i in range(16):
    e(f"v_mov_b32 v{96+i}, 0")
e("s_waitcnt lgkmcnt(0)")
for i in range(16):
    e(f"v_lshlrev_b32 v{176+i}, 16, v{160+i}")
e("s_waitcnt vmcnt(0)")
for i in range(8):
    for j in range(4):
        w = 64 + 4*i + j
        for b in range(2):
            a = 96 + 8*b + 2*j
            e(f"v_dot2_f32_bf16 v{a}, v{w}, v{160+8*b+i}, v{a}")
            e(f"v_dot2_f32_bf16 v{a+1}, v{w}, v{176+8*b+i}, v{a+1}")
red16(96)
red16_addr(11, 12, 9)
lds_wait_ge(24, F_ALLC-LB, 1, 25, 33, sleep=8)
e("s_lshl_b32 s66, s74, 9")
e("s_add_u32 s66, s66, s34")
e(f"s_add_u32 s66, s66, {R_P}")
e("v_and_b32 v12, 8, v1")
e("v_cmp_eq_u32 vcc, 0, v12")
e("s_and_saveexec_b64 s[64:65], vcc")
e("buffer_store_dwordx4 v[96:99], v11, s[36:39], s66 offen sc1")
e("s_mov_b64 exec, s[64:65]")
stamp(1)
lab("H67_noffn1")
e("s_and_b32 s64, s2, 31")
e("s_cmp_ge_u32 s64, 28")
e("s_cbranch_scc1 H6_fred")
srd(52, 20, 21, 1792*512*2)
e("v_lshlrev_b32 v10, 12, v8")
e("v_lshl_add_u32 v10, v9, 4, v10")
e("s_lshl_b32 s66, s64, 16")
e("s_lshl_b32 s67, s74, 15")
e("s_add_u32 s66, s66, s67")
e("s_add_u32 s66, s66, s63")
for i in range(4):
    e(f"buffer_load_dwordx4 v[{48+4*i}:{51+4*i}], v10, s[52:55], s66 offen offset:{i*1024} nt")
lds_wait_ge(24, F_ALLC-LB, 1, 25, 33, sleep=8)
lds_wait_ge(24, F_LANDED-LB, PGATE, 25, 33, sleep=8)
e("v_lshlrev_b32 v11, 4, v8")
e(f"s_lshl_b32 s66, s64, {RSH+3}")
e("s_lshl_b32 s67, s74, 7")
e("s_add_u32 s66, s66, s67")
e(f"s_add_u32 s66, s66, {R_P}")
for rb in range(1, 8):
    e(f"v_add_u32 v{200+rb}, {rb << RSH}, v11")
def p_issue():
    for rb in range(8):
        for mb in range(4):
            r = 64 + (rb*4+mb)*4
            e(f"buffer_load_dwordx4 v[{r}:{r+3}], v{11 if rb == 0 else 200+rb}, s[36:39], s66 offen offset:{mb*256} sc1")
poll_loads(p_issue, list(range(64, 192)), 28, 68, sleep=48)
for rb in range(1, 8):
    for k in range(16):
        e(f"v_add_f32 v{64+k}, v{64+k}, v{64+rb*16+k}")
for k in range(8):
    round_pair(64+k, 72+k, 96)
    silu(97, 64+k, 98, 99)
    e("v_cvt_pk_bf16_f32 v96, v97, v97")
    e("v_lshlrev_b32 v97, 16, v96")
    e(f"v_mul_f32 v97, v97, v{72+k}")
    e("v_cvt_pk_bf16_f32 v96, v97, v97")
    e(f"v_and_b32 v{80+2*k}, 0xffff, v96")
    e(f"v_lshlrev_b32 v{81+2*k}, 16, v96")
for i in range(16):
    e(f"v_mov_b32 v{96+i}, 0")
for i in range(4):
    for j in range(4):
        w = 48 + 4*i + j
        for b in range(2):
            a = 96 + 8*b + 2*j
            e(f"v_dot2_f32_bf16 v{a}, v{w}, v{80+b*8+2*i}, v{a}")
            e(f"v_dot2_f32_bf16 v{a+1}, v{w}, v{81+b*8+2*i}, v{a+1}")
red16(96)
red16_addr(11, 12, 9)
e("s_lshl_b32 s66, s74, 9")
e("s_add_u32 s66, s66, s34")
e("v_and_b32 v12, 8, v1")
e("v_cmp_eq_u32 vcc, 0, v12")
e("s_and_saveexec_b64 s[64:65], vcc")
e(f"buffer_store_dwordx4 v[96:99], v11, s[36:39], s66 offen offset:{R_F} sc1")
e("s_mov_b64 exec, s[64:65]")
stamp(3)
e("s_branch HI_TAIL")
lab("H6_fred")
e("s_cmp_lg_u32 s64, 28")
e("s_cbranch_scc1 HI_TAIL")
e("s_cmp_lg_u32 s28, 6")
e("s_cbranch_scc1 HI_TAIL")
lds_wait_ge(24, F_ALLC-LB, 1, 25, 33, sleep=8)
lds_wait_ge(24, F_LANDED-LB, FGATE, 25, 33, sleep=8)
e("v_lshlrev_b32 v13, 3, v1")
e(f"s_lshl_b32 s33, s35, {RSH+5}")
for hh in range(1, 28):
    e(f"v_add_u32 v{200+hh}, {hh << RSH}, v13")
def fr_issue():
    for hh in range(28):
        for pt in range(2):
            r = 64 + (hh*2+pt)*2
            e(f"buffer_load_dwordx2 v[{r}:{r+1}], v{13 if hh == 0 else 200+hh}, s[36:39], s33 offen offset:{R_F + pt*512} sc1")
poll_loads(fr_issue, list(range(64, 176)), 28, 66, sleep=64)
for k in range(1, 56):
    e(f"v_add_f32 v64, v64, v{64+2*k}")
    e(f"v_add_f32 v65, v65, v{65+2*k}")
round_pair(64, 65, 66)
silu(68, 64, 70, 71)
silu(69, 65, 70, 71)
round_pair(68, 69, 66)
e(f"v_add_u32 v13, {L_G}, v13")
e("ds_write_b64 v13, v[68:69]")
e("s_waitcnt lgkmcnt(0)")
stamp(3)
e("s_branch HI_TAIL")


lab("HI_TAIL")
e("s_waitcnt vmcnt(0)")
e("v_lshlrev_b32 v8, 4, v5")
e(f"v_add_u32 v8, {L_OL}, v8")
for i in range(16):
    e(f"v_mov_b32 v{96+i}, 0")
red16_addr(11, 12, 6)
e("s_sub_u32 s33, s28, 4")
e("s_lshl_b32 s33, s33, 9")
e(f"s_add_u32 s33, s33, {L_RED}")
e("v_add_u32 v11, s33, v11")
e("s_barrier")
e("s_barrier")
e("ds_read_b128 v[16:19], v8")
e("ds_read_b128 v[20:23], v8 offset:512")
e("s_waitcnt lgkmcnt(0)")
for i in range(8):
    e(f"v_lshlrev_b32 v{24+i}, 16, v{16+i}")
for i in range(4):
    for j in range(4):
        w = 32 + 4*i + j
        for b in range(2):
            a = 96 + 8*b + 2*j
            e(f"v_dot2_f32_bf16 v{a}, v{w}, v{16+b*4+i}, v{a}")
            e(f"v_dot2_f32_bf16 v{a+1}, v{w}, v{24+b*4+i}, v{a+1}")
red16(96)
e("v_and_b32 v12, 8, v1")
e("v_cmp_eq_u32 vcc, 0, v12")
e("s_and_saveexec_b64 s[64:65], vcc")
e("ds_write_b128 v11, v[96:99]")
e("s_mov_b64 exec, s[64:65]")
e("s_waitcnt lgkmcnt(0)")
e("s_barrier")
e("s_cmp_ge_u32 s28, 6")
e("s_cbranch_scc1 DONE")
e("v_lshlrev_b32 v12, 2, v4")
e(f"v_add_u32 v13, {L_RED}, v12")
for w in range(4):
    e(f"ds_read_b32 v{16+w}, v13 offset:{w*512}")
e("s_waitcnt lgkmcnt(0)")
e("v_add_f32 v16, v16, v17")
e("v_add_f32 v18, v18, v19")
e("v_add_f32 v16, v16, v18")
e(f"buffer_store_dword v16, v12, s[36:39], s34 offen offset:{R_S} sc1")
lab("DONE")
if STAMP:
    e("s_mov_b64 exec, -1")
    e("s_cmp_ge_u32 s2, 256")
    e("s_cbranch_scc1 DONE2")
    stamp(7)
    e("s_waitcnt lgkmcnt(0) vmcnt(0)")
    for i in range(8):
        e(f"v_mov_b32 v{8+i}, s{84+2*i}")
    e("s_lshl_b32 s33, s2, 8")
    e("s_lshl_b32 s34, s28, 5")
    e("s_add_u32 s33, s33, s34")
    e(f"s_add_u32 s33, s33, {STAMP_OFF}")
    e("v_mov_b32 v4, s33")
    e("v_and_b32 v5, 63, v0")
    e("v_cmp_eq_u32 vcc, 0, v5")
    e("s_and_saveexec_b64 s[64:65], vcc")
    e("buffer_store_dwordx4 v[8:11], v4, s[36:39], 0 offen")
    e("buffer_store_dwordx4 v[12:15], v4, s[36:39], 0 offen offset:16")
    lab("DONE2")
e("s_endpgm")
raw('.section .rodata,"a"')
raw(".p2align 6")
raw(f".amdhsa_kernel {KNAME}")
raw("  .amdhsa_next_free_vgpr 248")
raw("  .amdhsa_next_free_sgpr 100")
raw("  .amdhsa_accum_offset 248")
raw("  .amdhsa_group_segment_fixed_size 0")
raw("  .amdhsa_kernarg_size 96")
raw("  .amdhsa_user_sgpr_count 2")
raw("  .amdhsa_user_sgpr_kernarg_segment_ptr 1")
raw("  .amdhsa_system_sgpr_workgroup_id_x 1")
raw("  .amdhsa_float_denorm_mode_32 3")
raw(".end_amdhsa_kernel")
hdr = open(f"cdna_kernels/{NAME}.s.ref").read().split("\n")
head = [l for l in hdr if l.startswith(";") and "@launch" not in l]
out = head + [f"; @launch grid=(256,1,1) block=(512,1,1) lds={LDS_TOTAL}",
              '.amdgcn_target "amdgcn-amd-amdhsa--gfx950"', ".text"]
dst = sys.argv[1] if len(sys.argv) > 1 else f"cdna_kernels/{NAME}.s"
open(dst, "w").write("\n".join(out + L) + "\n")
print("wrote", dst, len(L), "lines; LDS", LDS_TOTAL)
```

```python
import sys, os
NAME = "recurrent_scan__gqa_block_cached__glu_gated_swiglu__decode"
STAMP = int(os.environ.get("STAMP", "0"))
PURE = int(os.environ.get("PURE", "0"))
D = int(os.environ.get("D", "4"))
ROTM = int(os.environ.get("ROTM", "1"))
SST = int(os.environ.get("SST", "54"))
POOL = 16 * (64 - SST)
ABL = int(os.environ.get("ABL", "0"))
MAP = int(os.environ.get("MAP", "1"))
GSH, MSH = (4, 0) if MAP else (0, 4)
LA = int(os.environ.get("LA", "2"))
PGATE = int(os.environ.get("PGATE", "56"))
FGATE = int(os.environ.get("FGATE", "80"))
LOG2E = 0x3fb8aa3b
SCALE = 0x3db504f3
EPS   = 0x3727c5ac
SPIN_MAX = 400000
RSH = 13
R_O = 0; R_ML = 2048; R_S = 2560; R_F = 3072; R_P = 4096
WS_QI = 256 << RSH
WS_TK = WS_QI + 256 * 1024
WS_USED = WS_TK + 16 * 256
STAMP_OFF = 0x300000
LB = 131072
F_LANDED = LB + 0; F_CONS = LB + 16; F_QCNT = LB + 32; F_QRDY = LB + 36; F_ALLC = LB + 40; F_CLR = LB + 48; F_TOTAL = LB + 4; F_TQN = LB + 52; F_LIDX = LB + 56
L_TQ = LB + 64
L_XN = LB + 256
L_QP = LB + 2304
L_Q = LB + 3072
L_CMB = LB + 4096
L_OL = L_CMB + 4*2304
L_RED = L_OL + 1024
L_G = L_RED + 2048
LDS_TOTAL = L_G + 512

L = []
def e(s): L.append("    " + s)
def lab(s): L.append(s + ":")
def raw(s): L.append(s)
_uid = [0]
def uid(p):
    _uid[0] += 1
    return f"{p}_{_uid[0]}"
def srd(d, lo, hi, nrec):
    e(f"s_mov_b32 s{d}, s{lo}")
    e(f"s_mov_b32 s{d+1}, s{hi}")
    e(f"s_mov_b32 s{d+2}, {nrec}")
    e(f"s_mov_b32 s{d+3}, 0x00020000")
DPPM = "row_mask:0xf bank_mask:0xf"
def dpp_steps(op, regs, ctrls):
    for ctrl in ctrls:
        e("s_nop 1")
        for v in regs:
            e(f"v_{op}_f32_dpp v{v}, v{v}, v{v} {ctrl} {DPPM}")
ROWCTR = ("quad_perm:[1,0,3,2]", "quad_perm:[2,3,0,1]", "row_ror:4", "row_ror:8")
def cross_rows(op, regs, tmps):
    for sw in ("v_permlane16_swap_b32", "v_permlane32_swap_b32"):
        for v, t in zip(regs, tmps):
            e(f"v_mov_b32 v{t}, v{v}")
        e("s_nop 1")
        for v, t in zip(regs, tmps):
            e(f"{sw} v{v}, v{t}")
        e("s_nop 0")
        for v, t in zip(regs, tmps):
            e(f"v_{op}_f32 v{v}, v{v}, v{t}")
def allreduce(op, regs, tmps):
    dpp_steps(op, regs, ROWCTR)
    cross_rows(op, regs, tmps)
def swap_add(sw, pairs):
    e("s_nop 1")
    for a, b in pairs:
        e(f"{sw} v{a}, v{b}")
    e("s_nop 0")
    for a, b in pairs:
        e(f"v_add_f32 v{a}, v{a}, v{b}")
def unpack(dlo, dhi, src):
    e(f"v_lshlrev_b32 v{dlo}, 16, v{src}")
    e(f"v_and_b32 v{dhi}, 0xffff0000, v{src}")
def round_pair(a, b, t):
    e(f"v_cvt_pk_bf16_f32 v{t}, v{a}, v{b}")
    unpack(a, b, t)
def stamp(i):
    if STAMP:
        e(f"s_memrealtime s[{84+2*i}:{85+2*i}]")

def layernorm(nb, xa, o0, t0):
    f = o0
    B = range(nb)
    for b in B:
        for j in range(4):
            unpack(f + b*8 + 2*j, f + b*8 + 2*j + 1, xa + b*4 + j)
    S = [t0, t0+1][:nb]; U = [t0+2, t0+3][:nb]; Q = [t0+4, t0+5][:nb]; d = t0+6; R = [t0+7, t0+8][:nb]
    for b in B:
        e(f"v_add_f32 v{S[b]}, v{f+b*8}, v{f+b*8+1}")
        for j in range(2, 8):
            e(f"v_add_f32 v{S[b]}, v{S[b]}, v{f+b*8+j}")
    allreduce("add", S, U)
    for b in B: e(f"v_mul_f32 v{S[b]}, 0x3b000000, v{S[b]}")
    for b in B:
        e(f"v_sub_f32 v{d}, v{f+b*8}, v{S[b]}")
        e(f"v_mul_f32 v{Q[b]}, v{d}, v{d}")
        for j in range(1, 8):
            e(f"v_sub_f32 v{d}, v{f+b*8+j}, v{S[b]}")
            e(f"v_fmac_f32 v{Q[b]}, v{d}, v{d}")
    allreduce("add", Q, U)
    for b in B: e(f"v_mul_f32 v{Q[b]}, 0x3b000000, v{Q[b]}")
    for b in B:
        round_pair(S[b], Q[b], d)
        e(f"v_add_f32 v{Q[b]}, {EPS:#x}, v{Q[b]}")
        e(f"v_cvt_pk_bf16_f32 v{d}, v{Q[b]}, v{Q[b]}")
        e(f"v_lshlrev_b32 v{Q[b]}, 16, v{d}")
        e(f"v_sqrt_f32 v{Q[b]}, v{Q[b]}")
        e("s_nop 0")
        e(f"v_cvt_pk_bf16_f32 v{d}, v{Q[b]}, v{Q[b]}")
        e(f"v_lshlrev_b32 v{Q[b]}, 16, v{d}")
        e(f"v_rcp_f32 v{R[b]}, v{Q[b]}")
    e("s_nop 0")
    ta, tb, tc, td = t0+9, t0+10, t0+11, t0+12
    for b in B:
        s, q, r = S[b], Q[b], R[b]
        for j in range(0, 8, 2):
            a0, a1 = f+b*8+j, f+b*8+j+1
            e(f"v_sub_f32 v{a0}, v{a0}, v{s}")
            e(f"v_sub_f32 v{a1}, v{a1}, v{s}")
            round_pair(a0, a1, d)
            e(f"v_mul_f32 v{ta}, v{a0}, v{r}")
            e(f"v_mul_f32 v{tb}, v{a1}, v{r}")
            e(f"v_fma_f32 v{tc}, -v{ta}, v{q}, v{a0}")
            e(f"v_fma_f32 v{td}, -v{tb}, v{q}, v{a1}")
            e(f"v_fmac_f32 v{ta}, v{tc}, v{r}")
            e(f"v_fmac_f32 v{tb}, v{td}, v{r}")
            e(f"v_cvt_pk_bf16_f32 v{d}, v{ta}, v{tb}")
            e(f"v_and_b32 v{a0}, 0xffff, v{d}")
            e(f"v_lshrrev_b32 v{a1}, 16, v{d}")

def silu(dst, src, t1, t2):
    e(f"v_mul_f32 v{t1}, 0xbfb8aa3b, v{src}")
    e(f"v_exp_f32 v{t1}, v{t1}")
    e("s_nop 0")
    e(f"v_add_f32 v{t1}, 1.0, v{t1}")
    e(f"v_rcp_f32 v{t2}, v{t1}")
    e("s_nop 0")
    e(f"v_mul_f32 v{dst}, v{src}, v{t2}")

def lds_wait_ge(vaddr, off, need, vt, st, sleep=1):
    l0, l1 = uid("LW"), uid("LG")
    e("s_mov_b32 s82, 0")
    lab(l0)
    e(f"ds_read_b32 v{vt}, v{vaddr} offset:{off}")
    e("s_waitcnt lgkmcnt(0)")
    e(f"v_readfirstlane_b32 s{st}, v{vt}")
    e("s_add_u32 s82, s82, 1")
    e(f"s_cmp_ge_u32 s{st}, {need}")
    e(f"s_cbranch_scc1 {l1}")
    e(f"s_sleep {sleep}")
    e("s_cmp_lt_u32 s82, 0x800000")
    e(f"s_cbranch_scc1 {l0}")
    lab(l1)

def poll_loads(issue, regs, vt, scnt, sleep=None):
    l0, l1 = uid("PL"), uid("PG")
    e(f"s_mov_b32 s{scnt}, 0")
    lab(l0)
    issue()
    e("s_waitcnt vmcnt(0)")
    rs = list(regs)
    e(f"v_mov_b32 v{vt}, v{rs[0]}")
    i = 1
    while i < len(rs):
        if i + 1 < len(rs):
            e(f"v_max3_u32 v{vt}, v{vt}, v{rs[i]}, v{rs[i+1]}"); i += 2
        else:
            e(f"v_max_u32 v{vt}, v{vt}, v{rs[i]}"); i += 1
    e(f"v_cmp_eq_u32 vcc, -1, v{vt}")
    e(f"s_add_u32 s{scnt}, s{scnt}, 1")
    e("s_cmp_eq_u64 vcc, 0")
    e(f"s_cbranch_scc1 {l1}")
    if sleep is not None: e(f"s_sleep {sleep}")
    e(f"s_cmp_lt_u32 s{scnt}, {SPIN_MAX}")
    e(f"s_cbranch_scc1 {l0}")
    lab(l1)

def wait_all_counters(vt, va, scnt):
    l0, l1 = uid("WC"), uid("WG")
    e(f"v_and_b32 v{va}, 3, v1")
    e(f"v_lshlrev_b32 v{va}, 6, v{va}")
    e(f"v_and_b32 v{vt}, 12, v1")
    e(f"v_add_u32 v{va}, v{va}, v{vt}")
    e(f"s_mov_b32 s{scnt}, 0")
    lab(l0)
    e(f"buffer_load_dword v{vt}, v{va}, s[40:43], 0 offen sc1")
    e("s_waitcnt vmcnt(0)")
    e(f"v_cmp_gt_u32 vcc, 16, v{vt}")
    e(f"s_add_u32 s{scnt}, s{scnt}, 1")
    e("s_cmp_eq_u64 vcc, 0")
    e(f"s_cbranch_scc1 {l1}")
    e("s_sleep 32")
    e(f"s_cmp_lt_u32 s{scnt}, {SPIN_MAX}")
    e(f"s_cbranch_scc1 {l0}")
    lab(l1)

def red16(acc):
    e("s_nop 3")
    swap_add("v_permlane32_swap_b32", [(acc+j, acc+8+j) for j in range(8)])
    swap_add("v_permlane16_swap_b32", [(acc+j, acc+4+j) for j in range(4)])
    dpp_steps("add", [acc+j for j in range(4)], ("row_ror:8",))

def red16_addr(dst, tmp, cq):
    e(f"v_lshrrev_b32 v{dst}, 1, v3")
    e(f"v_lshlrev_b32 v{dst}, 8, v{dst}")
    e(f"v_and_b32 v{tmp}, 1, v3")
    e(f"v_lshl_add_u32 v{dst}, v{tmp}, 4, v{dst}")
    e(f"v_lshl_add_u32 v{dst}, v{cq}, 5, v{dst}")

KNAME = NAME + "_kernel"
raw(f".globl {KNAME}"); raw(".p2align 8"); raw(f".type {KNAME},@function"); lab(KNAME)
stamp(0)
e("s_cmp_ge_u32 s2, 256")
e("s_cbranch_scc1 DONE")
e("s_load_dwordx16 s[4:19], s[0:1], 0")
e("s_load_dwordx8 s[20:27], s[0:1], 64")
e("v_lshrrev_b32 v1, 6, v0")
e("s_nop 0")
e("v_readfirstlane_b32 s28, v1")
e("v_and_b32 v1, 63, v0")
if MAP:
    e("s_lshr_b32 s29, s2, 4")
    e("s_and_b32 s30, s2, 15")
else:
    e("s_and_b32 s29, s2, 15")
    e("s_lshr_b32 s30, s2, 4")
e("s_lshr_b32 s31, s29, 3")
e("s_and_b32 s32, s29, 7")
e(f"s_lshl_b32 s34, s2, {RSH}")
e("s_lshr_b32 s35, s2, 5")
e("v_and_b32 v2, 15, v1")
e("v_lshrrev_b32 v3, 4, v1")
e("s_cmp_ge_u32 s28, 4")
e("s_waitcnt lgkmcnt(0)")
srd(36, 26, 27, WS_USED if not STAMP else 0x400000)
srd(44, 4, 5, 2048)
e(f"s_mov_b32 s60, {LOG2E:#x}")
e(f"s_mov_b32 s61, {SCALE:#x}")
e("s_cbranch_scc1 ROLE_HI")
if PURE == 1: e("s_branch DONE")
if PURE == 3:
    srd(48, 10, 11, 512*4096*2)
    e("v_lshrrev_b32 v5, 3, v0"); e("v_and_b32 v6, 7, v0")
    e("v_lshlrev_b32 v7, 15, v5"); e("v_lshl_add_u32 v7, v6, 4, v7")
    e("s_lshl_b32 s62, s31, 4"); e("s_add_u32 s62, s62, s30")
    e("s_and_b32 s63, s62, 7"); e("s_lshl_b32 s63, s63, 7")
    e("s_lshr_b32 s62, s62, 3"); e("s_lshl_b32 s62, s62, 20")
    e("s_add_u32 s62, s62, s63"); e("s_lshl_b32 s63, s32, 10"); e("s_add_u32 s62, s62, s63")
    for i in range(4):
        if i: e("s_add_u32 s62, s62, 8192")
        e(f"buffer_load_dwordx4 v[{32+4*i}:{35+4*i}], v7, s[48:51], s62 offen nt")
    e("s_waitcnt vmcnt(0)")
    stamp(1)
    e("s_branch DONE")

srd(48, 10, 11, 512*4096*2)
e("v_lshlrev_b32 v4, 4, v1")
e("s_lshl_b32 s33, s31, 10")
e("buffer_load_dwordx4 v[8:11], v4, s[44:47], s33 offen")
e("v_lshrrev_b32 v5, 2, v0")
e("v_and_b32 v6, 3, v0")
e("v_lshlrev_b32 v7, 16, v5")
e("v_lshl_add_u32 v7, v6, 4, v7")
e("s_lshl_b32 s62, s32, 10")
e("s_lshl_b32 s63, s30, 6")
e("s_add_u32 s62, s62, s63")
WQNT = os.environ.get("WQNT", " nt")
for i in range(8):
    if i: e(f"s_add_u32 s62, s62, 8192")
    e(f"buffer_load_dwordx4 v[{32+4*i}:{35+4*i}], v7, s[48:51], s62 offen{WQNT}")
if PURE == 2:
    e("s_waitcnt vmcnt(0)")
    stamp(1)
    e("s_branch DONE")
e("s_barrier")
e(f"v_mov_b32 v14, {LB}")
e("v_mov_b32 v15, 1")
e("s_waitcnt vmcnt(8)")
layernorm(1, 8, 64, 80)
e("v_lshlrev_b32 v12, 5, v1")
e(f"v_add_u32 v12, {L_XN}, v12")
e("ds_write_b128 v12, v[64:67]")
e("ds_write_b128 v12, v[68:71] offset:16")
e("v_lshlrev_b32 v13, 5, v5")
e(f"v_add_u32 v13, {L_XN}, v13")
e("s_waitcnt lgkmcnt(0)")
e("ds_read_b128 v[64:67], v13")
e("ds_read_b128 v[68:71], v13 offset:16")
for i in range(8):
    e(f"v_mov_b32 v{96+i}, 0")
e("s_waitcnt lgkmcnt(0)")
for i in range(8):
    e(f"v_lshlrev_b32 v{72+i}, 16, v{64+i}")
e("s_waitcnt vmcnt(0)")
for i in range(8):
    for j in range(4):
        w = 32 + 4*i + j
        e(f"v_dot2_f32_bf16 v{96+2*j}, v{w}, v{64+i}, v{96+2*j}")
        e(f"v_dot2_f32_bf16 v{97+2*j}, v{w}, v{72+i}, v{97+2*j}")
e("s_nop 3")
swap_add("v_permlane32_swap_b32", [(96+j, 100+j) for j in range(4)])
swap_add("v_permlane16_swap_b32", [(96+j, 98+j) for j in range(2)])
dpp_steps("add", [96, 97], ("row_ror:4", "row_ror:8"))
e("v_lshlrev_b32 v12, 5, v6")
e("v_lshl_add_u32 v12, v3, 3, v12")
e("s_lshl_b32 s33, s28, 7")
e(f"s_add_u32 s33, s33, {L_QP}")
e("v_add_u32 v12, s33, v12")
e("v_and_b32 v13, 12, v1")
e("v_cmp_eq_u32 vcc, 0, v13")
e("s_and_saveexec_b64 s[64:65], vcc")
e("ds_write_b64 v12, v[96:97]")
e("s_mov_b64 exec, s[64:65]")
e("s_waitcnt lgkmcnt(0)")
e("v_cmp_eq_u32 vcc, 0, v1")
e("s_and_saveexec_b64 s[64:65], vcc")
e(f"ds_add_u32 v14, v15 offset:{F_QCNT-LB}")
e("s_mov_b64 exec, s[64:65]")
lab("C_pre")
e("s_lshl_b32 s33, s28, 14")
e("v_and_b32 v145, 7, v2")
e("v_lshlrev_b32 v145, 1, v145")
e("v_xor_b32 v145, v3, v145")
e("v_lshlrev_b32 v145, 4, v145")
e("v_lshl_add_u32 v145, v2, 8, v145")
e("v_add_u32 v160, s33, v145")
for s in range(1, 4):
    e(f"v_xor_b32 v{160+s}, {s*64}, v160")
for s in range(4):
    e(f"v_add_u32 v{164+s}, 0x10000, v{160+s}")
e("v_bfe_u32 v145, v1, 2, 2")
e("v_lshl_add_u32 v145, v3, 2, v145")
e("v_and_b32 v146, 7, v145")
e("v_lshlrev_b32 v146, 1, v146")
e("v_bfe_u32 v147, v1, 1, 1")
e("v_xor_b32 v146, v146, v147")
e("v_lshlrev_b32 v146, 4, v146")
e("v_lshl_add_u32 v146, v145, 8, v146")
e("v_and_b32 v147, 1, v1")
e("v_lshl_add_u32 v146, v147, 3, v146")
e("v_add_u32 v146, 8192, v146")
e("v_add_u32 v168, s33, v146")
for db in range(1, 8):
    e(f"v_xor_b32 v{168+db}, {db*32}, v168")
for db in range(8):
    e(f"v_add_u32 v{176+db}, 0x10000, v{168+db}")
for i in range(32):
    e(f"v_mov_b32 v{96+i}, 0")
e("v_mov_b32 v140, 0xff800000")
e("v_mov_b32 v141, 0")
e("s_lshl_b32 s66, s28, 1")
e("s_add_u32 s66, s66, 1")
e("s_mov_b32 s67, 0")
e("s_lshl_b32 s33, s28, 2")
e(f"s_add_u32 s33, s33, {F_CONS}")
e("v_mov_b32 v150, s33")
e("s_mov_b32 s68, 0")
KF = (32, 184); VF = (64, 216)
def c_load(p):
    kf, vf = KF[p], VF[p]
    sk = uid("CK"); l0 = uid("CW")
    e("s_cmp_ge_u32 s68, s66")
    e(f"s_cbranch_scc1 {sk}")
    e("s_mov_b32 s82, 0")
    lab(l0)
    e(f"ds_read_b64 v[144:145], v14 offset:{F_LANDED-LB}")
    e("s_waitcnt lgkmcnt(0)")
    e("v_readfirstlane_b32 s68, v144")
    e("v_readfirstlane_b32 s33, v145")
    e("s_add_u32 s82, s82, 1")
    e("s_cmp_ge_u32 s68, s66")
    e(f"s_cbranch_scc1 {sk}")
    e("s_sub_u32 s33, s33, 1")
    e("s_cmp_lt_u32 s33, s66")
    e("s_cbranch_scc1 C_done")
    e("s_sleep 1")
    e("s_cmp_lt_u32 s82, 0x800000")
    e(f"s_cbranch_scc1 {l0}")
    lab(sk)
    for t in range(2):
        for s in range(4):
            r = kf + (t*4+s)*4
            e(f"ds_read_b128 v[{r}:{r+3}], v{160+4*p+s} offset:{t*4096}")
    e("s_add_u32 s66, s66, 1")
    sk = uid("CV")
    e("s_cmp_ge_u32 s68, s66")
    e(f"s_cbranch_scc1 {sk}")
    lds_wait_ge(14, F_LANDED-LB, "s66", 144, 68, sleep=1)
    lab(sk)
    e("s_waitcnt lgkmcnt(4)")
    for db in range(8):
        for t in range(2):
            r = vf + db*4 + t*2
            e(f"ds_read_b64_tr_b16 v[{r}:{r+1}], v{168+8*p+db} offset:{t*4096}")
        if db in (2, 5):
            e("s_waitcnt lgkmcnt(4)")
    e("s_add_u32 s67, s67, 1")
    e("v_mov_b32 v151, s67")
    e("s_add_u32 s66, s66, 7")
    e("s_waitcnt lgkmcnt(0)")
    e("ds_write_b32 v150, v151")
def c_compute(p):
    if ABL >= 2: return
    kf, vf = KF[p], VF[p]
    for s in range(4):
        for t in range(2):
            r = kf + (t*4+s)*4
            d = 128 + 4*t
            c = "0" if s == 0 else f"v[{d}:{d+3}]"
            e(f"v_mfma_f32_16x16x32_bf16 v[{d}:{d+3}], v[{r}:{r+3}], v[{16+4*s}:{19+4*s}], {c}")
    e("s_nop 7")
    e("s_nop 1")
    S = list(range(128, 136))
    for j in range(0, 8, 2):
        round_pair(S[j], S[j+1], 152 + j//2)
    for j in range(8):
        e(f"v_mul_f32 v{S[j]}, s61, v{S[j]}")
    for j in range(0, 8, 2):
        round_pair(S[j], S[j+1], 152 + j//2)
    e("v_max3_f32 v144, v128, v129, v130")
    e("v_max3_f32 v145, v131, v132, v133")
    e("v_max3_f32 v144, v144, v134, v135")
    e("v_max_f32 v144, v144, v145")
    cross_rows("max", [144], [145])
    e("v_max_f32 v144, v144, v140")
    e("v_sub_f32 v145, v140, v144")
    e("v_mul_f32 v145, s60, v145")
    e("v_exp_f32 v145, v145")
    e("v_mov_b32 v140, v144")
    e("v_mul_f32 v146, s60, v144")
    for j in range(8):
        e(f"v_fma_f32 v{S[j]}, v{S[j]}, s60, -v146")
    for j in range(8):
        e(f"v_exp_f32 v{S[j]}, v{S[j]}")
    e("v_mul_f32 v141, v141, v145")
    for j in range(8):
        e(f"v_add_f32 v141, v141, v{S[j]}")
    for j in range(4):
        e(f"v_cvt_pk_bf16_f32 v{136+j}, v{S[2*j]}, v{S[2*j+1]}")
    for i in range(32):
        e(f"v_mul_f32 v{96+i}, v{96+i}, v145")
    e("s_nop 1")
    for db in range(8):
        e(f"v_mfma_f32_16x16x32_bf16 v[{96+4*db}:{99+4*db}], v[{vf+4*db}:{vf+4*db+3}], v[136:139], v[{96+4*db}:{99+4*db}]")
    e("s_nop 7")
    e("s_nop 1")
c_load(0)
c_load(1)
lds_wait_ge(14, F_QRDY-LB, 1, 144, 33, sleep=1)
stamp(2)
for i in range(16):
    e(f"v_mov_b32 v{16+i}, 0")
e("v_lshlrev_b32 v12, 8, v2")
e("v_lshl_add_u32 v12, v3, 4, v12")
e(f"v_add_u32 v12, {L_Q}, v12")
e("v_cmp_gt_u32 vcc, 4, v2")
e("s_and_saveexec_b64 s[64:65], vcc")
for s in range(4):
    e(f"ds_read_b128 v[{16+4*s}:{19+4*s}], v12 offset:{s*64}")
e("s_mov_b64 exec, s[64:65]")
e("s_waitcnt lgkmcnt(0)")
c_compute(0)
e("s_branch C_mid")
lab("C_loop")
c_load(0)
c_compute(0)
c_load(1)
lab("C_mid")
c_compute(1)
e("s_branch C_loop")
lab("C_done")
stamp(3)
cross_rows("add", [141], [145])
e(f"s_mul_i32 s33, s28, 2304")
e(f"s_add_u32 s33, s33, {L_CMB}")
e("v_lshlrev_b32 v144, 9, v2")
e("v_lshl_add_u32 v144, v3, 4, v144")
e("v_add_u32 v144, s33, v144")
e("v_lshlrev_b32 v145, 3, v2")
e("v_add_u32 v145, s33, v145")
e("v_cmp_gt_u32 vcc, 4, v2")
e("s_and_saveexec_b64 s[64:65], vcc")
for db in range(8):
    e(f"ds_write_b128 v144, v[{96+4*db}:{99+4*db}] offset:{db*64}")
e("ds_write_b64 v145, v[140:141] offset:2048")
e("s_mov_b64 exec, s[64:65]")
e("s_waitcnt lgkmcnt(0)")
e("s_barrier")
e("s_lshl_b32 s33, s28, 9")
e(f"s_add_u32 s33, s33, {L_CMB}")
e("v_lshlrev_b32 v144, 3, v1")
e("v_add_u32 v146, s33, v144")
e("s_lshl_b32 s33, s28, 3")
e(f"s_add_u32 s33, s33, {L_CMB + 2048}")
e("v_mov_b32 v145, s33")
for w in range(4):
    e(f"ds_read_b64 v[{32+2*w}:{33+2*w}], v146 offset:{w*2304}")
    e(f"ds_read_b64 v[{40+2*w}:{41+2*w}], v145 offset:{w*2304}")
e("s_waitcnt lgkmcnt(0)")
e("v_max3_f32 v48, v40, v42, v44")
e("v_max_f32 v48, v48, v46")
for w in range(4):
    e(f"v_sub_f32 v{50+w}, v{40+2*w}, v48")
    e(f"v_mul_f32 v{50+w}, s60, v{50+w}")
    e(f"v_exp_f32 v{50+w}, v{50+w}")
e("s_nop 0")
e("v_mul_f32 v49, v41, v50")
e("v_mul_f32 v54, v32, v50")
e("v_mul_f32 v55, v33, v50")
for w in range(1, 4):
    e(f"v_fmac_f32 v49, v{41+2*w}, v{50+w}")
    e(f"v_fmac_f32 v54, v{32+2*w}, v{50+w}")
    e(f"v_fmac_f32 v55, v{33+2*w}, v{50+w}")
e("s_lshl_b32 s33, s28, 9")
e("s_add_u32 s33, s33, s34")
e(f"buffer_store_dwordx2 v[54:55], v144, s[36:39], s33 offen offset:{R_O} sc1")
e("s_lshl_b32 s33, s28, 3")
e("s_add_u32 s33, s33, s34")
e("v_cmp_eq_u32 vcc, 0, v1")
e("s_and_saveexec_b64 s[64:65], vcc")
e(f"buffer_store_dwordx2 v[48:49], v144, s[36:39], s33 offen offset:{R_ML} sc1")
e("s_mov_b64 exec, s[64:65]")
stamp(4)
e("s_and_b32 s62, s2, 3")
e("s_lshr_b32 s63, s28, 1")
e("s_lshl_b32 s63, s63, 3")
e("s_bfe_u32 s33, s2, 0x30002")
e("s_add_u32 s63, s63, s33")
e(f"s_lshl_b32 s63, s63, {RSH+GSH}")
e("s_lshl_b32 s69, s62, 9")
e("s_add_u32 s69, s69, s63")
e("s_lshl_b32 s70, s62, 3")
e("s_add_u32 s70, s70, s63")
e("v_and_b32 v4, 127, v0")
e("v_lshlrev_b32 v4, 2, v4")
e(f"v_lshlrev_b32 v5, {RSH+MSH}, v2")
for sp in range(1, 16):
    e(f"v_add_u32 v{200+sp}, {sp << (RSH+MSH)}, v4")
def t1_issue():
    e(f"buffer_load_dwordx2 v[6:7], v5, s[36:39], s70 offen offset:{R_ML} sc1")
    for sp in range(16):
        e(f"buffer_load_dword v{8+sp}, v{4 if sp == 0 else 200+sp}, s[36:39], s69 offen offset:{R_O} sc1")
poll_loads(t1_issue, [6, 7] + list(range(8, 24)), 28, 66)
stamp(5)
e("v_mov_b32 v28, v6")
dpp_steps("max", [28], ROWCTR)
e("v_sub_f32 v29, v6, v28")
e("v_mul_f32 v29, s60, v29")
e("v_exp_f32 v29, v29")
e("s_nop 0")
e("v_mul_f32 v30, v29, v7")
dpp_steps("add", [30], ROWCTR)
e("v_rcp_f32 v31, v30")
e("s_nop 1")
for sp in range(16):
    e(f"v_readlane_b32 s{66+sp}, v29, {sp}")
e("s_nop 1")
e("v_mul_f32 v27, s66, v8")
for sp in range(1, 16):
    e(f"v_fmac_f32 v27, s{66+sp}, v{8+sp}")
e("v_mul_f32 v8, v27, v31")
e("v_fma_f32 v9, -v8, v30, v27")
e("v_fmac_f32 v8, v9, v31")
e("v_cvt_pk_bf16_f32 v8, v8, v8")
e("v_and_b32 v8, 0xffff, v8")
e("v_lshlrev_b32 v9, 2, v0")
e(f"v_add_u32 v9, {L_OL}, v9")
e("ds_write_b32 v9, v8")
e("s_waitcnt lgkmcnt(0)")
e("s_barrier")
e("s_barrier")
e("s_and_b32 s33, s2, 31")
e("s_cmp_lg_u32 s33, 28")
e("s_cbranch_scc1 DONE")
e("s_cmp_ge_u32 s28, 2")
e("s_cbranch_scc1 DONE")
e("v_lshlrev_b32 v4, 2, v0")
e(f"s_lshl_b32 s33, s35, {RSH+5}")
for hh in range(1, 32):
    e(f"v_add_u32 v{200+hh}, {hh << RSH}, v4")
e("s_lshl_b32 s62, s35, 7")
e("v_lshlrev_b32 v5, 1, v1")
e("s_lshl_b32 s63, s28, 10")
e("s_add_u32 s62, s62, s63")
e("buffer_load_ushort v6, v5, s[44:47], s62 offen")
e(f"v_add_u32 v7, {L_G}, v4")
e("ds_read_b32 v100, v7")
def t2_issue():
    for hh in range(32):
        e(f"buffer_load_dword v{64+hh}, v{4 if hh == 0 else 200+hh}, s[36:39], s33 offen offset:{R_S} sc1")
poll_loads(t2_issue, list(range(64, 96)), 28, 66)
for st in (16, 8, 4, 2, 1):
    for k in range(st):
        e(f"v_add_f32 v{64+k}, v{64+k}, v{64+k+st}")
e("s_waitcnt lgkmcnt(0)")
e("v_cvt_pk_bf16_f32 v64, v64, v64")
e("v_lshlrev_b32 v64, 16, v64")
e("v_mul_f32 v67, v64, v100")
e("v_cvt_pk_bf16_f32 v67, v67, v67")
e("v_lshlrev_b32 v67, 16, v67")
e("v_lshlrev_b32 v6, 16, v6")
e("v_add_f32 v67, v6, v67")
e("v_cvt_pk_bf16_f32 v67, v67, v67")
srd(48, 22, 23, 2048)
e("buffer_store_short v67, v5, s[48:51], s62 offen")
stamp(6)
e("s_branch DONE")

lab("ROLE_HI")
srd(48, 12, 13, 4096*512*2)
e("v_subrev_u32 v4, 256, v0")
e("v_lshrrev_b32 v5, 3, v4")
e("v_and_b32 v6, 7, v4")
e("v_lshlrev_b32 v7, 12, v5")
e("v_lshl_add_u32 v7, v6, 4, v7")
e("s_and_b32 s62, s2, 31")
e("s_lshl_b32 s62, s62, 17")
e("s_lshl_b32 s63, s35, 7")
e("s_add_u32 s62, s62, s63")
e(f"v_mov_b32 v24, {LB}")
e("s_cmp_lg_u32 s28, 4")
e("s_cbranch_scc1 ROLE_H")
def wo_loads():
    for i in range(4):
        if ABL >= 1:
            e(f"buffer_load_dwordx4 v[{32+4*i}:{35+4*i}], v7, s[44:47], 0 offen offset:4000")
            continue
        e(f"buffer_load_dwordx4 v[{32+4*i}:{35+4*i}], v7, s[48:51], s62 offen offset:{i*1024} nt")
e("s_lshl_b32 s64, s29, 23")
e("s_lshl_b32 s75, s30, 19")
e("s_add_u32 s52, s6, s64"); e("s_addc_u32 s53, s7, 0"); e("s_mov_b32 s54, 0x800000"); e("s_mov_b32 s55, 0x00020000")
e("s_add_u32 s56, s8, s64"); e("s_addc_u32 s57, s9, 0"); e("s_mov_b32 s58, 0x800000"); e("s_mov_b32 s59, 0x00020000")
e("v_lshlrev_b32 v8, 1, v3")
e("v_xor_b32 v8, v2, v8")
e("v_lshlrev_b32 v8, 4, v8")
e("v_lshl_add_u32 v8, v3, 8, v8")
e("v_xor_b32 v9, 0x80, v8")
e(f"s_mul_i32 s66, s2, {ROTM}")
e("s_and_b32 s66, s66, 63")
e("s_lshl_b32 s76, s66, 13")
e("s_add_u32 s66, s76, s75")
e("s_mov_b32 s67, 0")
def dma(srdb):
    for half in range(2):
        if half:
            e("s_add_u32 m0, s67, 4096")
            e("s_add_u32 s68, s66, 4096")
        else:
            e("s_mov_b32 m0, s67")
            e("s_nop 0")
        so = 68 if half else 66
        for n in range(4):
            e(f"buffer_load_dwordx4 v{9 if (n & 1) else 8}, s[{srdb}:{srdb+3}], s{so} offen offset:{n*1024} nt lds")
    e("s_add_u32 s67, s67, 8192")
    e("s_and_b32 s67, s67, 0x1ffff")
def adv():
    e("s_add_u32 s76, s76, 8192")
    e("s_and_b32 s76, s76, 0x7ffff")
    e("s_add_u32 s66, s76, s75")
assert D % 2 == 0
for n in range(D):
    dma(52 if n % 2 == 0 else 56)
    if n % 2: adv()
e("v_lshlrev_b32 v15, 2, v1")
e(f"v_add_u32 v15, {LB}, v15")
e("v_mov_b32 v16, 0")
e("ds_write_b32 v15, v16")
e("s_waitcnt lgkmcnt(0)")
e("s_barrier")
e("s_mov_b32 s69, 0")
e(f"s_mov_b32 s70, {D//2}")
lab("L_loop")
for kv in range(2):
    e(f"s_waitcnt vmcnt({(D-1)*8})")
    e("s_add_u32 s69, s69, 1")
    e("v_mov_b32 v16, s69")
    e(f"ds_write_b32 v24, v16 offset:{F_LANDED-LB}")
    if kv == 0 and not PURE:
        sk = uid("LF")
        e("s_cmp_lt_u32 s70, 8")
        e(f"s_cbranch_scc1 {sk}")
        e("s_and_b32 s71, s70, 3")
        e("s_lshl_b32 s71, s71, 2")
        e(f"s_add_u32 s71, s71, {F_CONS}")
        e("v_mov_b32 v17, s71")
        e("s_lshr_b32 s72, s70, 2")
        e("s_sub_u32 s72, s72, 1")
        lds_wait_ge(17, 0, "s72", 18, 73, sleep=1)
        lab(sk)
    dma(52 if kv == 0 else 56)
adv()
e("s_add_u32 s70, s70, 1")
if STAMP:
    for si, cnt in ((1, 8), (2, 16), (4, 32), (5, 64), (6, 96)):
        sk = uid("LS")
        e(f"s_cmp_lg_u32 s69, {cnt}")
        e(f"s_cbranch_scc1 {sk}")
        stamp(si)
        lab(sk)
e(f"s_cmp_lt_u32 s70, {64 if PURE else SST}")
e("s_cbranch_scc1 L_loop")
if not PURE:
    e(f"s_sub_u32 s77, s70, {SST - 1}")
    lds_wait_ge(24, F_TQN-LB, "s77", 18, 73, sleep=1)
    e("s_lshl_b32 s71, s77, 2")
    e(f"s_add_u32 s71, s71, {L_TQ - 4}")
    e("v_mov_b32 v17, s71")
    e("ds_read_b32 v18, v17")
    e("v_mov_b32 v16, s77")
    e(f"ds_write_b32 v24, v16 offset:{F_LIDX-LB}")
    e("s_waitcnt lgkmcnt(0)")
    e("v_readfirstlane_b32 s71, v18")
    e("s_nop 0")
    e(f"s_cmp_ge_u32 s71, {POOL}")
    e("s_cbranch_scc1 L_done")
    e("s_and_b32 s72, s71, 15")
    e("s_lshr_b32 s71, s71, 4")
    e(f"s_lshl_b32 s73, s29, {GSH}")
    e(f"s_lshl_b32 s74, s72, {MSH}")
    e("s_add_u32 s73, s73, s74")
    e(f"s_mul_i32 s73, s73, {ROTM}")
    e("s_add_u32 s73, s73, s71")
    e(f"s_add_u32 s73, s73, {SST}")
    e("s_and_b32 s73, s73, 63")
    e("s_lshl_b32 s73, s73, 13")
    e("s_lshl_b32 s72, s72, 19")
    e("s_add_u32 s66, s72, s73")
    e("s_branch L_loop")
    lab("L_done")
    e("s_lshl_b32 s71, s70, 1")
    e("v_mov_b32 v16, s71")
    e(f"ds_write_b32 v24, v16 offset:{F_TOTAL-LB}")
wo_loads()
for j in range(D):
    e(f"s_waitcnt vmcnt({(D-1-j)*8 + 4})")
    e("s_add_u32 s69, s69, 1")
    e("v_mov_b32 v16, s69")
    e(f"ds_write_b32 v24, v16 offset:{F_LANDED-LB}")
e("s_waitcnt lgkmcnt(0)")
stamp(3)
e("s_branch DONE" if PURE else "s_branch HI_TAIL")

lab("ROLE_H")
if PURE: e("s_branch DONE")
e("s_cmp_lg_u32 s28, 5")
e("s_cbranch_scc1 ROLE_H67")
e("v_lshlrev_b32 v10, 4, v1")
e("s_lshl_b32 s71, s2, 10")
e(f"s_add_u32 s71, s71, {WS_QI}")
e("v_mov_b32 v16, -1"); e("v_mov_b32 v17, -1"); e("v_mov_b32 v18, -1"); e("v_mov_b32 v19, -1")
e("buffer_store_dwordx4 v[16:19], v10, s[36:39], s71 offen sc1")
e("s_barrier")
e("v_and_b32 v13, 3, v1")
e("v_lshlrev_b32 v13, 4, v13")
e("v_lshrrev_b32 v11, 2, v1")
e(f"v_lshlrev_b32 v11, {10+MSH}, v11")
e("v_add_u32 v11, v11, v13")
e(f"s_lshl_b32 s72, s29, {10+GSH}")
e("s_lshl_b32 s73, s30, 6")
e("s_add_u32 s72, s72, s73")
e(f"s_add_u32 s72, s72, {WS_QI}")
e("v_mov_b32 v15, 1")
lds_wait_ge(24, F_QCNT-LB, 4, 16, 33, sleep=0)
e("v_lshlrev_b32 v12, 3, v2")
e(f"v_add_u32 v12, {L_QP}, v12")
for w in range(4):
    e(f"ds_read_b64 v[{16+2*w}:{17+2*w}], v12 offset:{w*128}")
e("s_waitcnt lgkmcnt(0)")
e("v_add_f32 v16, v16, v18"); e("v_add_f32 v17, v17, v19")
e("v_add_f32 v20, v20, v22"); e("v_add_f32 v21, v21, v23")
e("v_add_f32 v16, v16, v20"); e("v_add_f32 v17, v17, v21")
e("v_cvt_pk_bf16_f32 v16, v16, v17")
e("v_lshlrev_b32 v12, 2, v2")
e(f"v_add_u32 v12, {L_Q}, v12")
e("ds_write_b32 v12, v16")
e(f"v_add_u32 v12, {L_Q}, v13")
e("s_waitcnt lgkmcnt(0)")
e("ds_read_b128 v[20:23], v12")
e("s_waitcnt vmcnt(0) lgkmcnt(0)")
e("buffer_store_dwordx4 v[20:23], v11, s[36:39], s72 offen sc1")
stamp(4)
poll_loads(lambda: e("buffer_load_dwordx4 v[16:19], v10, s[36:39], s71 offen sc1"), [16,17,18,19], 26, 66)
e(f"v_add_u32 v13, {L_Q}, v10")
e("ds_write_b128 v13, v[16:19]")
e("s_waitcnt lgkmcnt(0)")
e(f"ds_write_b32 v24, v15 offset:{F_QRDY-LB}")
e("buffer_store_dwordx4 v[20:23], v11, s[36:39], s72 offen sc1")
e("s_waitcnt lgkmcnt(0)")
srd(40, 24, 25, 256)
e("v_mov_b32 v8, -1"); e("v_mov_b32 v9, -1"); e("v_mov_b32 v10, -1"); e("v_mov_b32 v11, -1")
e("v_lshlrev_b32 v12, 4, v1")
e("s_add_u32 s33, s34, 4096")
for i in range(4):
    e(f"buffer_store_dwordx4 v[8:11], v12, s[36:39], s34 offen offset:{i*1024} sc1")
e("buffer_store_dwordx4 v[8:11], v12, s[36:39], s33 offen sc1")
e("s_lshl_b32 s78, s29, 8")
e(f"s_add_u32 s78, s78, {WS_TK}")
e("v_mov_b32 v27, 0")
e("s_cmp_lg_u32 s30, 0")
e("s_cbranch_scc1 H5_notlead")
e("buffer_store_dword v27, v27, s[36:39], s78 offen sc1")
lab("H5_notlead")
e("s_and_b32 s83, s29, 3")
e("s_lshl_b32 s83, s83, 6")
e("s_and_b32 s33, s29, 12")
e("s_add_u32 s83, s83, s33")
e("v_mov_b32 v13, s83")
e("v_mov_b32 v14, 1")
e("s_waitcnt vmcnt(0)")
e("v_cmp_eq_u32 vcc, 0, v1")
e("s_and_saveexec_b64 s[64:65], vcc")
e("buffer_atomic_add v14, v13, s[40:43], 0 offen")
e("s_mov_b64 exec, s[64:65]")
wo_loads()
stamp(1)
lds_wait_ge(24, F_LANDED-LB, 32, 25, 33, sleep=8)
wait_all_counters(25, 26, 66)
e("v_mov_b32 v25, 1")
e(f"ds_write_b32 v24, v25 offset:{F_ALLC-LB}")
e("s_waitcnt lgkmcnt(0)")
stamp(2)
lds_wait_ge(24, F_LANDED-LB, 2*(SST-8), 25, 33, sleep=8)
e("s_mov_b32 s79, 0")
e("v_lshlrev_b32 v28, 2, v1")
e(f"v_add_u32 v28, {L_TQ}, v28")
e("v_cmp_gt_u32 vcc, 2, v1")
e("s_and_saveexec_b64 s[64:65], vcc")
lab("A_loop")
e("v_mov_b32 v29, 1")
e("buffer_atomic_add v29, v27, s[36:39], s78 offen sc0")
e("s_waitcnt vmcnt(0)")
e(f"v_mov_b32_dpp v30, v29 quad_perm:[1,0,3,2] {DPPM}")
e("s_nop 1")
e("v_min_u32 v31, v29, v30")
e("v_max_u32 v30, v29, v30")
e("v_cmp_eq_u32 vcc, 0, v1")
e("s_nop 1")
e("v_cndmask_b32 v29, v30, v31, vcc")
e("ds_write_b32 v28, v29")
e("v_add_u32 v28, 8, v28")
e("s_add_u32 s79, s79, 2")
e("v_mov_b32 v31, s79")
e("s_waitcnt lgkmcnt(0)")
e(f"ds_write_b32 v24, v31 offset:{F_TQN-LB}")
e("v_readfirstlane_b32 s33, v30")
e("s_nop 0")
e(f"s_cmp_ge_u32 s33, {POOL}")
e("s_cbranch_scc1 A_done")
e("s_cmp_ge_u32 s79, 46")
e("s_cbranch_scc1 A_done2")
e(f"s_sub_u32 s80, s79, {LA}")
e(f"s_cmp_le_u32 s79, {LA}")
e("s_cbranch_scc1 A_loop")
lds_wait_ge(24, F_LIDX-LB, "s80", 25, 33, sleep=1)
e("s_branch A_loop")
lab("A_done2")
e("v_mov_b32 v29, -1")
e("ds_write_b32 v28, v29")
e("s_add_u32 s79, s79, 2")
e("v_mov_b32 v31, s79")
e("s_waitcnt lgkmcnt(0)")
e(f"ds_write_b32 v24, v31 offset:{F_TQN-LB}")
lab("A_done")
e("s_waitcnt lgkmcnt(0)")
e("s_mov_b64 exec, s[64:65]")
stamp(3)
e("s_branch HI_TAIL")

lab("ROLE_H67")
e("s_barrier")
if ABL >= 1: e("s_branch HI_TAIL")
lds_wait_ge(24, F_QRDY-LB, 1, 25, 33, sleep=4)
wo_loads()
e("v_lshrrev_b32 v8, 3, v1")
e("v_and_b32 v9, 7, v1")
e("s_sub_u32 s74, s28, 6")
e("s_cmp_ge_u32 s2, 224")
e("s_cbranch_scc1 H67_noffn1")
e("s_cmp_eq_u32 s28, 6")
e("s_cselect_b32 s52, s16, s18")
e("s_cselect_b32 s53, s17, s19")
e(f"s_mov_b32 s54, {512*1792*2}")
e("s_mov_b32 s55, 0x00020000")
e("v_lshlrev_b32 v12, 4, v1")
e("buffer_load_dwordx4 v[16:19], v12, s[44:47], 0 offen")
e("buffer_load_dwordx4 v[20:23], v12, s[44:47], 0 offen offset:1024")
e("v_mul_u32_u24 v10, 28672, v8")
e("v_lshl_add_u32 v10, v9, 4, v10")
e("s_lshr_b32 s64, s2, 3")
e("s_lshl_b32 s64, s64, 7")
e("s_and_b32 s81, s2, 7")
e("s_mul_i32 s65, s81, 229376")
e("s_add_u32 s66, s64, s65")
for i in range(8):
    if i: e("s_add_u32 s66, s66, 3584")
    e(f"buffer_load_dwordx4 v[{64+4*i}:{67+4*i}], v10, s[52:55], s66 offen nt")
e("s_waitcnt vmcnt(8)")
layernorm(2, 16, 128, 144)
e("s_lshl_b32 s64, s81, 3")
e("v_add_u32 v12, s64, v8")
e("v_lshlrev_b32 v12, 2, v12")
for i in range(16):
    e(f"ds_bpermute_b32 v{160+i}, v12, v{128+i}")
    if i == 7: e("s_waitcnt lgkmcnt(4)")
for i in range(16):
    e(f"v_mov_b32 v{96+i}, 0")
e("s_waitcnt lgkmcnt(0)")
for i in range(16):
    e(f"v_lshlrev_b32 v{176+i}, 16, v{160+i}")
e("s_waitcnt vmcnt(0)")
for i in range(8):
    for j in range(4):
        w = 64 + 4*i + j
        for b in range(2):
            a = 96 + 8*b + 2*j
            e(f"v_dot2_f32_bf16 v{a}, v{w}, v{160+8*b+i}, v{a}")
            e(f"v_dot2_f32_bf16 v{a+1}, v{w}, v{176+8*b+i}, v{a+1}")
red16(96)
red16_addr(11, 12, 9)
lds_wait_ge(24, F_ALLC-LB, 1, 25, 33, sleep=8)
e("s_lshl_b32 s66, s74, 9")
e("s_add_u32 s66, s66, s34")
e(f"s_add_u32 s66, s66, {R_P}")
e("v_and_b32 v12, 8, v1")
e("v_cmp_eq_u32 vcc, 0, v12")
e("s_and_saveexec_b64 s[64:65], vcc")
e("buffer_store_dwordx4 v[96:99], v11, s[36:39], s66 offen sc1")
e("s_mov_b64 exec, s[64:65]")
stamp(1)
lab("H67_noffn1")
e("s_and_b32 s64, s2, 31")
e("s_cmp_ge_u32 s64, 28")
e("s_cbranch_scc1 H6_fred")
srd(52, 20, 21, 1792*512*2)
e("v_lshlrev_b32 v10, 12, v8")
e("v_lshl_add_u32 v10, v9, 4, v10")
e("s_lshl_b32 s66, s64, 16")
e("s_lshl_b32 s67, s74, 15")
e("s_add_u32 s66, s66, s67")
e("s_add_u32 s66, s66, s63")
for i in range(4):
    e(f"buffer_load_dwordx4 v[{48+4*i}:{51+4*i}], v10, s[52:55], s66 offen offset:{i*1024} nt")
lds_wait_ge(24, F_ALLC-LB, 1, 25, 33, sleep=8)
lds_wait_ge(24, F_LANDED-LB, PGATE, 25, 33, sleep=8)
e("v_lshlrev_b32 v11, 4, v8")
e(f"s_lshl_b32 s66, s64, {RSH+3}")
e("s_lshl_b32 s67, s74, 7")
e("s_add_u32 s66, s66, s67")
e(f"s_add_u32 s66, s66, {R_P}")
for rb in range(1, 8):
    e(f"v_add_u32 v{200+rb}, {rb << RSH}, v11")
def p_issue():
    for rb in range(8):
        for mb in range(4):
            r = 64 + (rb*4+mb)*4
            e(f"buffer_load_dwordx4 v[{r}:{r+3}], v{11 if rb == 0 else 200+rb}, s[36:39], s66 offen offset:{mb*256} sc1")
poll_loads(p_issue, list(range(64, 192)), 28, 68, sleep=48)
for rb in range(1, 8):
    for k in range(16):
        e(f"v_add_f32 v{64+k}, v{64+k}, v{64+rb*16+k}")
for k in range(8):
    round_pair(64+k, 72+k, 96)
    silu(97, 64+k, 98, 99)
    e("v_cvt_pk_bf16_f32 v96, v97, v97")
    e("v_lshlrev_b32 v97, 16, v96")
    e(f"v_mul_f32 v97, v97, v{72+k}")
    e("v_cvt_pk_bf16_f32 v96, v97, v97")
    e(f"v_and_b32 v{80+2*k}, 0xffff, v96")
    e(f"v_lshlrev_b32 v{81+2*k}, 16, v96")
for i in range(16):
    e(f"v_mov_b32 v{96+i}, 0")
for i in range(4):
    for j in range(4):
        w = 48 + 4*i + j
        for b in range(2):
            a = 96 + 8*b + 2*j
            e(f"v_dot2_f32_bf16 v{a}, v{w}, v{80+b*8+2*i}, v{a}")
            e(f"v_dot2_f32_bf16 v{a+1}, v{w}, v{81+b*8+2*i}, v{a+1}")
red16(96)
red16_addr(11, 12, 9)
e("s_lshl_b32 s66, s74, 9")
e("s_add_u32 s66, s66, s34")
e("v_and_b32 v12, 8, v1")
e("v_cmp_eq_u32 vcc, 0, v12")
e("s_and_saveexec_b64 s[64:65], vcc")
e(f"buffer_store_dwordx4 v[96:99], v11, s[36:39], s66 offen offset:{R_F} sc1")
e("s_mov_b64 exec, s[64:65]")
stamp(3)
e("s_branch HI_TAIL")
lab("H6_fred")
e("s_cmp_lg_u32 s64, 28")
e("s_cbranch_scc1 HI_TAIL")
e("s_cmp_lg_u32 s28, 6")
e("s_cbranch_scc1 HI_TAIL")
lds_wait_ge(24, F_ALLC-LB, 1, 25, 33, sleep=8)
lds_wait_ge(24, F_LANDED-LB, FGATE, 25, 33, sleep=8)
e("v_lshlrev_b32 v13, 3, v1")
e(f"s_lshl_b32 s33, s35, {RSH+5}")
for hh in range(1, 28):
    e(f"v_add_u32 v{200+hh}, {hh << RSH}, v13")
def fr_issue():
    for hh in range(28):
        for pt in range(2):
            r = 64 + (hh*2+pt)*2
            e(f"buffer_load_dwordx2 v[{r}:{r+1}], v{13 if hh == 0 else 200+hh}, s[36:39], s33 offen offset:{R_F + pt*512} sc1")
poll_loads(fr_issue, list(range(64, 176)), 28, 66, sleep=64)
for k in range(1, 56):
    e(f"v_add_f32 v64, v64, v{64+2*k}")
    e(f"v_add_f32 v65, v65, v{65+2*k}")
round_pair(64, 65, 66)
silu(68, 64, 70, 71)
silu(69, 65, 70, 71)
round_pair(68, 69, 66)
e(f"v_add_u32 v13, {L_G}, v13")
e("ds_write_b64 v13, v[68:69]")
e("s_waitcnt lgkmcnt(0)")
stamp(3)
e("s_branch HI_TAIL")


lab("HI_TAIL")
e("s_waitcnt vmcnt(0)")
e("v_lshlrev_b32 v8, 4, v5")
e(f"v_add_u32 v8, {L_OL}, v8")
for i in range(16):
    e(f"v_mov_b32 v{96+i}, 0")
red16_addr(11, 12, 6)
e("s_sub_u32 s33, s28, 4")
e("s_lshl_b32 s33, s33, 9")
e(f"s_add_u32 s33, s33, {L_RED}")
e("v_add_u32 v11, s33, v11")
e("s_barrier")
e("s_barrier")
e("ds_read_b128 v[16:19], v8")
e("ds_read_b128 v[20:23], v8 offset:512")
e("s_waitcnt lgkmcnt(0)")
for i in range(8):
    e(f"v_lshlrev_b32 v{24+i}, 16, v{16+i}")
for i in range(4):
    for j in range(4):
        w = 32 + 4*i + j
        for b in range(2):
            a = 96 + 8*b + 2*j
            e(f"v_dot2_f32_bf16 v{a}, v{w}, v{16+b*4+i}, v{a}")
            e(f"v_dot2_f32_bf16 v{a+1}, v{w}, v{24+b*4+i}, v{a+1}")
red16(96)
e("v_and_b32 v12, 8, v1")
e("v_cmp_eq_u32 vcc, 0, v12")
e("s_and_saveexec_b64 s[64:65], vcc")
e("ds_write_b128 v11, v[96:99]")
e("s_mov_b64 exec, s[64:65]")
e("s_waitcnt lgkmcnt(0)")
e("s_barrier")
e("s_cmp_ge_u32 s28, 6")
e("s_cbranch_scc1 DONE")
e("v_lshlrev_b32 v12, 2, v4")
e(f"v_add_u32 v13, {L_RED}, v12")
for w in range(4):
    e(f"ds_read_b32 v{16+w}, v13 offset:{w*512}")
e("s_waitcnt lgkmcnt(0)")
e("v_add_f32 v16, v16, v17")
e("v_add_f32 v18, v18, v19")
e("v_add_f32 v16, v16, v18")
e(f"buffer_store_dword v16, v12, s[36:39], s34 offen offset:{R_S} sc1")
lab("DONE")
if STAMP:
    e("s_mov_b64 exec, -1")
    e("s_cmp_ge_u32 s2, 256")
    e("s_cbranch_scc1 DONE2")
    stamp(7)
    e("s_waitcnt lgkmcnt(0) vmcnt(0)")
    for i in range(8):
        e(f"v_mov_b32 v{8+i}, s{84+2*i}")
    e("s_lshl_b32 s33, s2, 8")
    e("s_lshl_b32 s34, s28, 5")
    e("s_add_u32 s33, s33, s34")
    e(f"s_add_u32 s33, s33, {STAMP_OFF}")
    e("v_mov_b32 v4, s33")
    e("v_and_b32 v5, 63, v0")
    e("v_cmp_eq_u32 vcc, 0, v5")
    e("s_and_saveexec_b64 s[64:65], vcc")
    e("buffer_store_dwordx4 v[8:11], v4, s[36:39], 0 offen")
    e("buffer_store_dwordx4 v[12:15], v4, s[36:39], 0 offen offset:16")
    if STAMP == 2:
        srd(40, 24, 25, 256)
        e("v_mov_b32 v20, 16"); e("buffer_atomic_umax v15, v20, s[40:43], 0 offen")
        e("v_not_b32 v21, v8"); e("v_mov_b32 v20, 20"); e("buffer_atomic_umax v21, v20, s[40:43], 0 offen")
        e("s_cmp_lg_u32 s28, 4"); e("s_cbranch_scc1 DG1")
        e("v_mov_b32 v20, 24"); e("buffer_atomic_umax v11, v20, s[40:43], 0 offen")
        e("v_mov_b32 v20, 32"); e("buffer_atomic_umax v10, v20, s[40:43], 0 offen")
        e("v_not_b32 v21, v11"); e("v_mov_b32 v20, 36"); e("buffer_atomic_umax v21, v20, s[40:43], 0 offen")
        e("v_mov_b32 v20, 40"); e("buffer_atomic_umax v13, v20, s[40:43], 0 offen")
        lab("DG1")
        e("s_cmp_lg_u32 s28, 0"); e("s_cbranch_scc1 DG2")
        e("v_mov_b32 v20, 28"); e("buffer_atomic_umax v10, v20, s[40:43], 0 offen")
        e("v_mov_b32 v20, 44"); e("buffer_atomic_umax v8, v20, s[40:43], 0 offen")
        lab("DG2")
    lab("DONE2")
e("s_endpgm")
raw('.section .rodata,"a"')
raw(".p2align 6")
raw(f".amdhsa_kernel {KNAME}")
raw("  .amdhsa_next_free_vgpr 248")
raw("  .amdhsa_next_free_sgpr 100")
raw("  .amdhsa_accum_offset 248")
raw("  .amdhsa_group_segment_fixed_size 0")
raw("  .amdhsa_kernarg_size 96")
raw("  .amdhsa_user_sgpr_count 2")
raw("  .amdhsa_user_sgpr_kernarg_segment_ptr 1")
raw("  .amdhsa_system_sgpr_workgroup_id_x 1")
raw("  .amdhsa_float_denorm_mode_32 3")
raw(".end_amdhsa_kernel")
hdr = open(f"cdna_kernels/{NAME}.s.ref").read().split("\n")
head = [l for l in hdr if l.startswith(";") and "@launch" not in l]
out = head + [f"; @launch grid=(256,1,1) block=(512,1,1) lds={LDS_TOTAL}",
              '.amdgcn_target "amdgcn-amd-amdhsa--gfx950"', ".text"]
dst = sys.argv[1] if len(sys.argv) > 1 else f"cdna_kernels/{NAME}.s"
open(dst, "w").write("\n".join(out + L) + "\n")
print("wrote", dst, len(L), "lines; LDS", LDS_TOTAL)
```

```python
import sys, os
NAME = "recurrent_scan__gqa_block_cached__glu_gated_swiglu__decode"
STAMP = int(os.environ.get("STAMP", "0"))
PURE = int(os.environ.get("PURE", "0"))
D = int(os.environ.get("D", "4"))
ROTM = int(os.environ.get("ROTM", "1"))
SST = int(os.environ.get("SST", "54"))
POOL = 16 * (64 - SST)
ABL = int(os.environ.get("ABL", "0"))
PRIO = int(os.environ.get("PRIO", "2"))
D0 = int(os.environ.get("D0", "4"))
MAP = int(os.environ.get("MAP", "1"))
GSH, MSH = (4, 0) if MAP else (0, 4)
LA = int(os.environ.get("LA", "2"))
PGATE = int(os.environ.get("PGATE", "56"))
FGATE = int(os.environ.get("FGATE", "80"))
LOG2E = 0x3fb8aa3b
SCALE = 0x3db504f3
EPS   = 0x3727c5ac
SPIN_MAX = 400000
RSH = 13
R_O = 0; R_ML = 2048; R_S = 2560; R_F = 3072; R_P = 4096
WS_QI = 256 << RSH
WS_TK = WS_QI + 256 * 1024
WS_USED = WS_TK + 16 * 256
STAMP_OFF = 0x300000
LB = 131072
F_LANDED = LB + 0; F_CONS = LB + 16; F_QCNT = LB + 32; F_QRDY = LB + 36; F_ALLC = LB + 40; F_CLR = LB + 48; F_TOTAL = LB + 4; F_TQN = LB + 52; F_LIDX = LB + 56
L_TQ = LB + 64
L_XN = LB + 256
L_QP = LB + 2304
L_Q = LB + 3072
L_CMB = LB + 4096
L_OL = L_CMB + 4*2304
L_RED = L_OL + 1024
L_G = L_RED + 2048
LDS_TOTAL = L_G + 512

L = []
def e(s): L.append("    " + s)
def lab(s): L.append(s + ":")
def raw(s): L.append(s)
_uid = [0]
def uid(p):
    _uid[0] += 1
    return f"{p}_{_uid[0]}"
def srd(d, lo, hi, nrec):
    e(f"s_mov_b32 s{d}, s{lo}")
    e(f"s_mov_b32 s{d+1}, s{hi}")
    e(f"s_mov_b32 s{d+2}, {nrec}")
    e(f"s_mov_b32 s{d+3}, 0x00020000")
DPPM = "row_mask:0xf bank_mask:0xf"
def dpp_steps(op, regs, ctrls):
    for ctrl in ctrls:
        e("s_nop 1")
        for v in regs:
            e(f"v_{op}_f32_dpp v{v}, v{v}, v{v} {ctrl} {DPPM}")
ROWCTR = ("quad_perm:[1,0,3,2]", "quad_perm:[2,3,0,1]", "row_ror:4", "row_ror:8")
def cross_rows(op, regs, tmps):
    for sw in ("v_permlane16_swap_b32", "v_permlane32_swap_b32"):
        for v, t in zip(regs, tmps):
            e(f"v_mov_b32 v{t}, v{v}")
        e("s_nop 1")
        for v, t in zip(regs, tmps):
            e(f"{sw} v{v}, v{t}")
        e("s_nop 0")
        for v, t in zip(regs, tmps):
            e(f"v_{op}_f32 v{v}, v{v}, v{t}")
def allreduce(op, regs, tmps):
    dpp_steps(op, regs, ROWCTR)
    cross_rows(op, regs, tmps)
def swap_add(sw, pairs):
    e("s_nop 1")
    for a, b in pairs:
        e(f"{sw} v{a}, v{b}")
    e("s_nop 0")
    for a, b in pairs:
        e(f"v_add_f32 v{a}, v{a}, v{b}")
def unpack(dlo, dhi, src):
    e(f"v_lshlrev_b32 v{dlo}, 16, v{src}")
    e(f"v_and_b32 v{dhi}, 0xffff0000, v{src}")
def round_pair(a, b, t):
    e(f"v_cvt_pk_bf16_f32 v{t}, v{a}, v{b}")
    unpack(a, b, t)
def stamp(i):
    if STAMP:
        e(f"s_memrealtime s[{84+2*i}:{85+2*i}]")

def layernorm(nb, xa, o0, t0):
    f = o0
    B = range(nb)
    for b in B:
        for j in range(4):
            unpack(f + b*8 + 2*j, f + b*8 + 2*j + 1, xa + b*4 + j)
    S = [t0, t0+1][:nb]; U = [t0+2, t0+3][:nb]; Q = [t0+4, t0+5][:nb]; d = t0+6; R = [t0+7, t0+8][:nb]
    for b in B:
        e(f"v_add_f32 v{S[b]}, v{f+b*8}, v{f+b*8+1}")
        for j in range(2, 8):
            e(f"v_add_f32 v{S[b]}, v{S[b]}, v{f+b*8+j}")
    allreduce("add", S, U)
    for b in B: e(f"v_mul_f32 v{S[b]}, 0x3b000000, v{S[b]}")
    for b in B:
        e(f"v_sub_f32 v{d}, v{f+b*8}, v{S[b]}")
        e(f"v_mul_f32 v{Q[b]}, v{d}, v{d}")
        for j in range(1, 8):
            e(f"v_sub_f32 v{d}, v{f+b*8+j}, v{S[b]}")
            e(f"v_fmac_f32 v{Q[b]}, v{d}, v{d}")
    allreduce("add", Q, U)
    for b in B: e(f"v_mul_f32 v{Q[b]}, 0x3b000000, v{Q[b]}")
    for b in B:
        round_pair(S[b], Q[b], d)
        e(f"v_add_f32 v{Q[b]}, {EPS:#x}, v{Q[b]}")
        e(f"v_cvt_pk_bf16_f32 v{d}, v{Q[b]}, v{Q[b]}")
        e(f"v_lshlrev_b32 v{Q[b]}, 16, v{d}")
        e(f"v_sqrt_f32 v{Q[b]}, v{Q[b]}")
        e("s_nop 0")
        e(f"v_cvt_pk_bf16_f32 v{d}, v{Q[b]}, v{Q[b]}")
        e(f"v_lshlrev_b32 v{Q[b]}, 16, v{d}")
        e(f"v_rcp_f32 v{R[b]}, v{Q[b]}")
    e("s_nop 0")
    ta, tb, tc, td = t0+9, t0+10, t0+11, t0+12
    for b in B:
        s, q, r = S[b], Q[b], R[b]
        for j in range(0, 8, 2):
            a0, a1 = f+b*8+j, f+b*8+j+1
            e(f"v_sub_f32 v{a0}, v{a0}, v{s}")
            e(f"v_sub_f32 v{a1}, v{a1}, v{s}")
            round_pair(a0, a1, d)
            e(f"v_mul_f32 v{ta}, v{a0}, v{r}")
            e(f"v_mul_f32 v{tb}, v{a1}, v{r}")
            e(f"v_fma_f32 v{tc}, -v{ta}, v{q}, v{a0}")
            e(f"v_fma_f32 v{td}, -v{tb}, v{q}, v{a1}")
            e(f"v_fmac_f32 v{ta}, v{tc}, v{r}")
            e(f"v_fmac_f32 v{tb}, v{td}, v{r}")
            e(f"v_cvt_pk_bf16_f32 v{d}, v{ta}, v{tb}")
            e(f"v_and_b32 v{a0}, 0xffff, v{d}")
            e(f"v_lshrrev_b32 v{a1}, 16, v{d}")

def silu(dst, src, t1, t2):
    e(f"v_mul_f32 v{t1}, 0xbfb8aa3b, v{src}")
    e(f"v_exp_f32 v{t1}, v{t1}")
    e("s_nop 0")
    e(f"v_add_f32 v{t1}, 1.0, v{t1}")
    e(f"v_rcp_f32 v{t2}, v{t1}")
    e("s_nop 0")
    e(f"v_mul_f32 v{dst}, v{src}, v{t2}")

def lds_wait_ge(vaddr, off, need, vt, st, sleep=1):
    l0, l1 = uid("LW"), uid("LG")
    e("s_mov_b32 s82, 0")
    lab(l0)
    e(f"ds_read_b32 v{vt}, v{vaddr} offset:{off}")
    e("s_waitcnt lgkmcnt(0)")
    e(f"v_readfirstlane_b32 s{st}, v{vt}")
    e("s_add_u32 s82, s82, 1")
    e(f"s_cmp_ge_u32 s{st}, {need}")
    e(f"s_cbranch_scc1 {l1}")
    e(f"s_sleep {sleep}")
    e("s_cmp_lt_u32 s82, 0x800000")
    e(f"s_cbranch_scc1 {l0}")
    lab(l1)

def poll_loads(issue, regs, vt, scnt, sleep=None):
    l0, l1 = uid("PL"), uid("PG")
    e(f"s_mov_b32 s{scnt}, 0")
    lab(l0)
    issue()
    e("s_waitcnt vmcnt(0)")
    rs = list(regs)
    e(f"v_mov_b32 v{vt}, v{rs[0]}")
    i = 1
    while i < len(rs):
        if i + 1 < len(rs):
            e(f"v_max3_u32 v{vt}, v{vt}, v{rs[i]}, v{rs[i+1]}"); i += 2
        else:
            e(f"v_max_u32 v{vt}, v{vt}, v{rs[i]}"); i += 1
    e(f"v_cmp_eq_u32 vcc, -1, v{vt}")
    e(f"s_add_u32 s{scnt}, s{scnt}, 1")
    e("s_cmp_eq_u64 vcc, 0")
    e(f"s_cbranch_scc1 {l1}")
    if sleep is not None: e(f"s_sleep {sleep}")
    e(f"s_cmp_lt_u32 s{scnt}, {SPIN_MAX}")
    e(f"s_cbranch_scc1 {l0}")
    lab(l1)

def wait_all_counters(vt, va, scnt):
    l0, l1 = uid("WC"), uid("WG")
    e(f"v_and_b32 v{va}, 3, v1")
    e(f"v_lshlrev_b32 v{va}, 6, v{va}")
    e(f"v_and_b32 v{vt}, 12, v1")
    e(f"v_add_u32 v{va}, v{va}, v{vt}")
    e(f"s_mov_b32 s{scnt}, 0")
    lab(l0)
    e(f"buffer_load_dword v{vt}, v{va}, s[40:43], 0 offen sc1")
    e("s_waitcnt vmcnt(0)")
    e(f"v_cmp_gt_u32 vcc, 16, v{vt}")
    e(f"s_add_u32 s{scnt}, s{scnt}, 1")
    e("s_cmp_eq_u64 vcc, 0")
    e(f"s_cbranch_scc1 {l1}")
    e("s_sleep 32")
    e(f"s_cmp_lt_u32 s{scnt}, {SPIN_MAX}")
    e(f"s_cbranch_scc1 {l0}")
    lab(l1)

def red16(acc):
    e("s_nop 3")
    swap_add("v_permlane32_swap_b32", [(acc+j, acc+8+j) for j in range(8)])
    swap_add("v_permlane16_swap_b32", [(acc+j, acc+4+j) for j in range(4)])
    dpp_steps("add", [acc+j for j in range(4)], ("row_ror:8",))

def red16_addr(dst, tmp, cq):
    e(f"v_lshrrev_b32 v{dst}, 1, v3")
    e(f"v_lshlrev_b32 v{dst}, 8, v{dst}")
    e(f"v_and_b32 v{tmp}, 1, v3")
    e(f"v_lshl_add_u32 v{dst}, v{tmp}, 4, v{dst}")
    e(f"v_lshl_add_u32 v{dst}, v{cq}, 5, v{dst}")

KNAME = NAME + "_kernel"
raw(f".globl {KNAME}"); raw(".p2align 8"); raw(f".type {KNAME},@function"); lab(KNAME)
stamp(0)
e("s_cmp_ge_u32 s2, 256")
e("s_cbranch_scc1 DONE")
e("s_load_dwordx16 s[4:19], s[0:1], 0")
e("s_load_dwordx8 s[20:27], s[0:1], 64")
e("v_lshrrev_b32 v1, 6, v0")
e("s_nop 0")
e("v_readfirstlane_b32 s28, v1")
e("v_and_b32 v1, 63, v0")
if MAP:
    e("s_lshr_b32 s29, s2, 4")
    e("s_and_b32 s30, s2, 15")
else:
    e("s_and_b32 s29, s2, 15")
    e("s_lshr_b32 s30, s2, 4")
e("s_lshr_b32 s31, s29, 3")
e("s_and_b32 s32, s29, 7")
e(f"s_lshl_b32 s34, s2, {RSH}")
e("s_lshr_b32 s35, s2, 5")
e("v_and_b32 v2, 15, v1")
e("v_lshrrev_b32 v3, 4, v1")
e("s_cmp_ge_u32 s28, 4")
e("s_waitcnt lgkmcnt(0)")
srd(36, 26, 27, WS_USED if not STAMP else 0x400000)
srd(44, 4, 5, 2048)
e(f"s_mov_b32 s60, {LOG2E:#x}")
e(f"s_mov_b32 s61, {SCALE:#x}")
e("s_cbranch_scc1 ROLE_HI")
if PURE == 1: e("s_branch DONE")
if PURE == 3:
    srd(48, 10, 11, 512*4096*2)
    e("v_lshrrev_b32 v5, 3, v0"); e("v_and_b32 v6, 7, v0")
    e("v_lshlrev_b32 v7, 15, v5"); e("v_lshl_add_u32 v7, v6, 4, v7")
    e("s_lshl_b32 s62, s31, 4"); e("s_add_u32 s62, s62, s30")
    e("s_and_b32 s63, s62, 7"); e("s_lshl_b32 s63, s63, 7")
    e("s_lshr_b32 s62, s62, 3"); e("s_lshl_b32 s62, s62, 20")
    e("s_add_u32 s62, s62, s63"); e("s_lshl_b32 s63, s32, 10"); e("s_add_u32 s62, s62, s63")
    for i in range(4):
        if i: e("s_add_u32 s62, s62, 8192")
        e(f"buffer_load_dwordx4 v[{32+4*i}:{35+4*i}], v7, s[48:51], s62 offen nt")
    e("s_waitcnt vmcnt(0)")
    stamp(1)
    e("s_branch DONE")

srd(48, 10, 11, 512*4096*2)
e("v_lshlrev_b32 v4, 4, v1")
e("s_lshl_b32 s33, s31, 10")
e("buffer_load_dwordx4 v[8:11], v4, s[44:47], s33 offen")
e("v_lshrrev_b32 v5, 2, v0")
e("v_and_b32 v6, 3, v0")
e("v_lshlrev_b32 v7, 16, v5")
e("v_lshl_add_u32 v7, v6, 4, v7")
e("s_lshl_b32 s62, s32, 10")
e("s_lshl_b32 s63, s30, 6")
e("s_add_u32 s62, s62, s63")
WQNT = os.environ.get("WQNT", " nt")
for i in range(8):
    if i: e(f"s_add_u32 s62, s62, 8192")
    e(f"buffer_load_dwordx4 v[{32+4*i}:{35+4*i}], v7, s[48:51], s62 offen{WQNT}")
if PURE == 2:
    e("s_waitcnt vmcnt(0)")
    stamp(1)
    e("s_branch DONE")
e("s_barrier")
e(f"v_mov_b32 v14, {LB}")
e("v_mov_b32 v15, 1")
e("s_waitcnt vmcnt(8)")
layernorm(1, 8, 64, 80)
e("v_lshlrev_b32 v12, 5, v1")
e(f"v_add_u32 v12, {L_XN}, v12")
e("ds_write_b128 v12, v[64:67]")
e("ds_write_b128 v12, v[68:71] offset:16")
e("v_lshlrev_b32 v13, 5, v5")
e(f"v_add_u32 v13, {L_XN}, v13")
e("s_waitcnt lgkmcnt(0)")
e("ds_read_b128 v[64:67], v13")
e("ds_read_b128 v[68:71], v13 offset:16")
for i in range(8):
    e(f"v_mov_b32 v{96+i}, 0")
e("s_waitcnt lgkmcnt(0)")
for i in range(8):
    e(f"v_lshlrev_b32 v{72+i}, 16, v{64+i}")
e("s_waitcnt vmcnt(0)")
for i in range(8):
    for j in range(4):
        w = 32 + 4*i + j
        e(f"v_dot2_f32_bf16 v{96+2*j}, v{w}, v{64+i}, v{96+2*j}")
        e(f"v_dot2_f32_bf16 v{97+2*j}, v{w}, v{72+i}, v{97+2*j}")
e("s_nop 3")
swap_add("v_permlane32_swap_b32", [(96+j, 100+j) for j in range(4)])
swap_add("v_permlane16_swap_b32", [(96+j, 98+j) for j in range(2)])
dpp_steps("add", [96, 97], ("row_ror:4", "row_ror:8"))
e("v_lshlrev_b32 v12, 5, v6")
e("v_lshl_add_u32 v12, v3, 3, v12")
e("s_lshl_b32 s33, s28, 7")
e(f"s_add_u32 s33, s33, {L_QP}")
e("v_add_u32 v12, s33, v12")
e("v_and_b32 v13, 12, v1")
e("v_cmp_eq_u32 vcc, 0, v13")
e("s_and_saveexec_b64 s[64:65], vcc")
e("ds_write_b64 v12, v[96:97]")
e("s_mov_b64 exec, s[64:65]")
e("s_waitcnt lgkmcnt(0)")
e("v_cmp_eq_u32 vcc, 0, v1")
e("s_and_saveexec_b64 s[64:65], vcc")
e(f"ds_add_u32 v14, v15 offset:{F_QCNT-LB}")
e("s_mov_b64 exec, s[64:65]")
lab("C_pre")
if PRIO >= 2: e("s_setprio 2")
e("s_lshl_b32 s33, s28, 14")
e("v_and_b32 v145, 7, v2")
e("v_lshlrev_b32 v145, 1, v145")
e("v_xor_b32 v145, v3, v145")
e("v_lshlrev_b32 v145, 4, v145")
e("v_lshl_add_u32 v145, v2, 8, v145")
e("v_add_u32 v160, s33, v145")
for s in range(1, 4):
    e(f"v_xor_b32 v{160+s}, {s*64}, v160")
for s in range(4):
    e(f"v_add_u32 v{164+s}, 0x10000, v{160+s}")
e("v_bfe_u32 v145, v1, 2, 2")
e("v_lshl_add_u32 v145, v3, 2, v145")
e("v_and_b32 v146, 7, v145")
e("v_lshlrev_b32 v146, 1, v146")
e("v_bfe_u32 v147, v1, 1, 1")
e("v_xor_b32 v146, v146, v147")
e("v_lshlrev_b32 v146, 4, v146")
e("v_lshl_add_u32 v146, v145, 8, v146")
e("v_and_b32 v147, 1, v1")
e("v_lshl_add_u32 v146, v147, 3, v146")
e("v_add_u32 v146, 8192, v146")
e("v_add_u32 v168, s33, v146")
for db in range(1, 8):
    e(f"v_xor_b32 v{168+db}, {db*32}, v168")
for db in range(8):
    e(f"v_add_u32 v{176+db}, 0x10000, v{168+db}")
for i in range(32):
    e(f"v_mov_b32 v{96+i}, 0")
e("v_mov_b32 v140, 0xff800000")
e("v_mov_b32 v141, 0")
e("s_lshl_b32 s66, s28, 1")
e("s_add_u32 s66, s66, 1")
e("s_mov_b32 s67, 0")
e("s_lshl_b32 s33, s28, 2")
e(f"s_add_u32 s33, s33, {F_CONS}")
e("v_mov_b32 v150, s33")
e("s_mov_b32 s68, 0")
KF = (32, 184); VF = (64, 216)
def c_load(p):
    kf, vf = KF[p], VF[p]
    sk = uid("CK"); l0 = uid("CW")
    e("s_cmp_ge_u32 s68, s66")
    e(f"s_cbranch_scc1 {sk}")
    e("s_mov_b32 s82, 0")
    lab(l0)
    e(f"ds_read_b64 v[144:145], v14 offset:{F_LANDED-LB}")
    e("s_waitcnt lgkmcnt(0)")
    e("v_readfirstlane_b32 s68, v144")
    e("v_readfirstlane_b32 s33, v145")
    e("s_add_u32 s82, s82, 1")
    e("s_cmp_ge_u32 s68, s66")
    e(f"s_cbranch_scc1 {sk}")
    e("s_sub_u32 s33, s33, 1")
    e("s_cmp_lt_u32 s33, s66")
    e("s_cbranch_scc1 C_done")
    e("s_sleep 1")
    e("s_cmp_lt_u32 s82, 0x800000")
    e(f"s_cbranch_scc1 {l0}")
    lab(sk)
    for t in range(2):
        for s in range(4):
            r = kf + (t*4+s)*4
            e(f"ds_read_b128 v[{r}:{r+3}], v{160+4*p+s} offset:{t*4096}")
    e("s_add_u32 s66, s66, 1")
    sk = uid("CV")
    e("s_cmp_ge_u32 s68, s66")
    e(f"s_cbranch_scc1 {sk}")
    lds_wait_ge(14, F_LANDED-LB, "s66", 144, 68, sleep=1)
    lab(sk)
    e("s_waitcnt lgkmcnt(4)")
    for db in range(8):
        for t in range(2):
            r = vf + db*4 + t*2
            e(f"ds_read_b64_tr_b16 v[{r}:{r+1}], v{168+8*p+db} offset:{t*4096}")
        if db in (2, 5):
            e("s_waitcnt lgkmcnt(4)")
    e("s_add_u32 s67, s67, 1")
    e("v_mov_b32 v151, s67")
    e("s_add_u32 s66, s66, 7")
    e("s_waitcnt lgkmcnt(0)")
    e("ds_write_b32 v150, v151")
def c_compute(p):
    if ABL >= 2: return
    kf, vf = KF[p], VF[p]
    for s in range(4):
        for t in range(2):
            r = kf + (t*4+s)*4
            d = 128 + 4*t
            c = "0" if s == 0 else f"v[{d}:{d+3}]"
            e(f"v_mfma_f32_16x16x32_bf16 v[{d}:{d+3}], v[{r}:{r+3}], v[{16+4*s}:{19+4*s}], {c}")
    e("s_nop 7")
    e("s_nop 1")
    S = list(range(128, 136))
    for j in range(0, 8, 2):
        round_pair(S[j], S[j+1], 152 + j//2)
    for j in range(8):
        e(f"v_mul_f32 v{S[j]}, s61, v{S[j]}")
    for j in range(0, 8, 2):
        round_pair(S[j], S[j+1], 152 + j//2)
    e("v_max3_f32 v144, v128, v129, v130")
    e("v_max3_f32 v145, v131, v132, v133")
    e("v_max3_f32 v144, v144, v134, v135")
    e("v_max_f32 v144, v144, v145")
    cross_rows("max", [144], [145])
    e("v_max_f32 v144, v144, v140")
    e("v_sub_f32 v145, v140, v144")
    e("v_mul_f32 v145, s60, v145")
    e("v_exp_f32 v145, v145")
    e("v_mov_b32 v140, v144")
    e("v_mul_f32 v146, s60, v144")
    for j in range(8):
        e(f"v_fma_f32 v{S[j]}, v{S[j]}, s60, -v146")
    for j in range(8):
        e(f"v_exp_f32 v{S[j]}, v{S[j]}")
    e("v_mul_f32 v141, v141, v145")
    for j in range(8):
        e(f"v_add_f32 v141, v141, v{S[j]}")
    for j in range(4):
        e(f"v_cvt_pk_bf16_f32 v{136+j}, v{S[2*j]}, v{S[2*j+1]}")
    for i in range(32):
        e(f"v_mul_f32 v{96+i}, v{96+i}, v145")
    e("s_nop 1")
    for db in range(8):
        e(f"v_mfma_f32_16x16x32_bf16 v[{96+4*db}:{99+4*db}], v[{vf+4*db}:{vf+4*db+3}], v[136:139], v[{96+4*db}:{99+4*db}]")
    e("s_nop 7")
    e("s_nop 1")
c_load(0)
c_load(1)
lds_wait_ge(14, F_QRDY-LB, 1, 144, 33, sleep=1)
stamp(2)
for i in range(16):
    e(f"v_mov_b32 v{16+i}, 0")
e("v_lshlrev_b32 v12, 8, v2")
e("v_lshl_add_u32 v12, v3, 4, v12")
e(f"v_add_u32 v12, {L_Q}, v12")
e("v_cmp_gt_u32 vcc, 4, v2")
e("s_and_saveexec_b64 s[64:65], vcc")
for s in range(4):
    e(f"ds_read_b128 v[{16+4*s}:{19+4*s}], v12 offset:{s*64}")
e("s_mov_b64 exec, s[64:65]")
e("s_waitcnt lgkmcnt(0)")
c_compute(0)
e("s_branch C_mid")
lab("C_loop")
c_load(0)
c_compute(0)
c_load(1)
lab("C_mid")
c_compute(1)
e("s_branch C_loop")
lab("C_done")
stamp(3)
cross_rows("add", [141], [145])
e(f"s_mul_i32 s33, s28, 2304")
e(f"s_add_u32 s33, s33, {L_CMB}")
e("v_lshlrev_b32 v144, 9, v2")
e("v_lshl_add_u32 v144, v3, 4, v144")
e("v_add_u32 v144, s33, v144")
e("v_lshlrev_b32 v145, 3, v2")
e("v_add_u32 v145, s33, v145")
e("v_cmp_gt_u32 vcc, 4, v2")
e("s_and_saveexec_b64 s[64:65], vcc")
for db in range(8):
    e(f"ds_write_b128 v144, v[{96+4*db}:{99+4*db}] offset:{db*64}")
e("ds_write_b64 v145, v[140:141] offset:2048")
e("s_mov_b64 exec, s[64:65]")
e("s_waitcnt lgkmcnt(0)")
e("s_barrier")
e("s_lshl_b32 s33, s28, 9")
e(f"s_add_u32 s33, s33, {L_CMB}")
e("v_lshlrev_b32 v144, 3, v1")
e("v_add_u32 v146, s33, v144")
e("s_lshl_b32 s33, s28, 3")
e(f"s_add_u32 s33, s33, {L_CMB + 2048}")
e("v_mov_b32 v145, s33")
for w in range(4):
    e(f"ds_read_b64 v[{32+2*w}:{33+2*w}], v146 offset:{w*2304}")
    e(f"ds_read_b64 v[{40+2*w}:{41+2*w}], v145 offset:{w*2304}")
e("s_waitcnt lgkmcnt(0)")
e("v_max3_f32 v48, v40, v42, v44")
e("v_max_f32 v48, v48, v46")
for w in range(4):
    e(f"v_sub_f32 v{50+w}, v{40+2*w}, v48")
    e(f"v_mul_f32 v{50+w}, s60, v{50+w}")
    e(f"v_exp_f32 v{50+w}, v{50+w}")
e("s_nop 0")
e("v_mul_f32 v49, v41, v50")
e("v_mul_f32 v54, v32, v50")
e("v_mul_f32 v55, v33, v50")
for w in range(1, 4):
    e(f"v_fmac_f32 v49, v{41+2*w}, v{50+w}")
    e(f"v_fmac_f32 v54, v{32+2*w}, v{50+w}")
    e(f"v_fmac_f32 v55, v{33+2*w}, v{50+w}")
e("s_lshl_b32 s33, s28, 9")
e("s_add_u32 s33, s33, s34")
e(f"buffer_store_dwordx2 v[54:55], v144, s[36:39], s33 offen offset:{R_O} sc1")
e("s_lshl_b32 s33, s28, 3")
e("s_add_u32 s33, s33, s34")
e("v_cmp_eq_u32 vcc, 0, v1")
e("s_and_saveexec_b64 s[64:65], vcc")
e(f"buffer_store_dwordx2 v[48:49], v144, s[36:39], s33 offen offset:{R_ML} sc1")
e("s_mov_b64 exec, s[64:65]")
stamp(4)
e("s_and_b32 s62, s2, 3")
e("s_lshr_b32 s63, s28, 1")
e("s_lshl_b32 s63, s63, 3")
e("s_bfe_u32 s33, s2, 0x30002")
e("s_add_u32 s63, s63, s33")
e(f"s_lshl_b32 s63, s63, {RSH+GSH}")
e("s_lshl_b32 s69, s62, 9")
e("s_add_u32 s69, s69, s63")
e("s_lshl_b32 s70, s62, 3")
e("s_add_u32 s70, s70, s63")
e("v_and_b32 v4, 127, v0")
e("v_lshlrev_b32 v4, 2, v4")
e(f"v_lshlrev_b32 v5, {RSH+MSH}, v2")
for sp in range(1, 16):
    e(f"v_add_u32 v{200+sp}, {sp << (RSH+MSH)}, v4")
def t1_issue():
    e(f"buffer_load_dwordx2 v[6:7], v5, s[36:39], s70 offen offset:{R_ML} sc1")
    for sp in range(16):
        e(f"buffer_load_dword v{8+sp}, v{4 if sp == 0 else 200+sp}, s[36:39], s69 offen offset:{R_O} sc1")
poll_loads(t1_issue, [6, 7] + list(range(8, 24)), 28, 66)
stamp(5)
e("v_mov_b32 v28, v6")
dpp_steps("max", [28], ROWCTR)
e("v_sub_f32 v29, v6, v28")
e("v_mul_f32 v29, s60, v29")
e("v_exp_f32 v29, v29")
e("s_nop 0")
e("v_mul_f32 v30, v29, v7")
dpp_steps("add", [30], ROWCTR)
e("v_rcp_f32 v31, v30")
e("s_nop 1")
for sp in range(16):
    e(f"v_readlane_b32 s{66+sp}, v29, {sp}")
e("s_nop 1")
e("v_mul_f32 v27, s66, v8")
for sp in range(1, 16):
    e(f"v_fmac_f32 v27, s{66+sp}, v{8+sp}")
e("v_mul_f32 v8, v27, v31")
e("v_fma_f32 v9, -v8, v30, v27")
e("v_fmac_f32 v8, v9, v31")
e("v_cvt_pk_bf16_f32 v8, v8, v8")
e("v_and_b32 v8, 0xffff, v8")
e("v_lshlrev_b32 v9, 2, v0")
e(f"v_add_u32 v9, {L_OL}, v9")
e("ds_write_b32 v9, v8")
e("s_waitcnt lgkmcnt(0)")
e("s_barrier")
e("s_barrier")
e("s_and_b32 s33, s2, 31")
e("s_cmp_lg_u32 s33, 28")
e("s_cbranch_scc1 DONE")
e("s_cmp_ge_u32 s28, 2")
e("s_cbranch_scc1 DONE")
e("v_lshlrev_b32 v4, 2, v0")
e(f"s_lshl_b32 s33, s35, {RSH+5}")
for hh in range(1, 32):
    e(f"v_add_u32 v{200+hh}, {hh << RSH}, v4")
e("s_lshl_b32 s62, s35, 7")
e("v_lshlrev_b32 v5, 1, v1")
e("s_lshl_b32 s63, s28, 10")
e("s_add_u32 s62, s62, s63")
e("buffer_load_ushort v6, v5, s[44:47], s62 offen")
e(f"v_add_u32 v7, {L_G}, v4")
e("ds_read_b32 v100, v7")
def t2_issue():
    for hh in range(32):
        e(f"buffer_load_dword v{64+hh}, v{4 if hh == 0 else 200+hh}, s[36:39], s33 offen offset:{R_S} sc1")
poll_loads(t2_issue, list(range(64, 96)), 28, 66)
for st in (16, 8, 4, 2, 1):
    for k in range(st):
        e(f"v_add_f32 v{64+k}, v{64+k}, v{64+k+st}")
e("s_waitcnt lgkmcnt(0)")
e("v_cvt_pk_bf16_f32 v64, v64, v64")
e("v_lshlrev_b32 v64, 16, v64")
e("v_mul_f32 v67, v64, v100")
e("v_cvt_pk_bf16_f32 v67, v67, v67")
e("v_lshlrev_b32 v67, 16, v67")
e("v_lshlrev_b32 v6, 16, v6")
e("v_add_f32 v67, v6, v67")
e("v_cvt_pk_bf16_f32 v67, v67, v67")
srd(48, 22, 23, 2048)
e("buffer_store_short v67, v5, s[48:51], s62 offen")
stamp(6)
e("s_branch DONE")

lab("ROLE_HI")
srd(48, 12, 13, 4096*512*2)
e("v_subrev_u32 v4, 256, v0")
e("v_lshrrev_b32 v5, 3, v4")
e("v_and_b32 v6, 7, v4")
e("v_lshlrev_b32 v7, 12, v5")
e("v_lshl_add_u32 v7, v6, 4, v7")
e("s_and_b32 s62, s2, 31")
e("s_lshl_b32 s62, s62, 17")
e("s_lshl_b32 s63, s35, 7")
e("s_add_u32 s62, s62, s63")
e(f"v_mov_b32 v24, {LB}")
e("s_cmp_lg_u32 s28, 4")
e("s_cbranch_scc1 ROLE_H")
def wo_loads():
    for i in range(4):
        if ABL >= 1:
            e(f"buffer_load_dwordx4 v[{32+4*i}:{35+4*i}], v7, s[44:47], 0 offen offset:4000")
            continue
        e(f"buffer_load_dwordx4 v[{32+4*i}:{35+4*i}], v7, s[48:51], s62 offen offset:{i*1024} nt")
if PRIO: e("s_setprio 3")
e("s_lshl_b32 s64, s29, 23")
e("s_lshl_b32 s75, s30, 19")
e("s_add_u32 s52, s6, s64"); e("s_addc_u32 s53, s7, 0"); e("s_mov_b32 s54, 0x800000"); e("s_mov_b32 s55, 0x00020000")
e("s_add_u32 s56, s8, s64"); e("s_addc_u32 s57, s9, 0"); e("s_mov_b32 s58, 0x800000"); e("s_mov_b32 s59, 0x00020000")
e("v_lshlrev_b32 v8, 1, v3")
e("v_xor_b32 v8, v2, v8")
e("v_lshlrev_b32 v8, 4, v8")
e("v_lshl_add_u32 v8, v3, 8, v8")
e("v_xor_b32 v9, 0x80, v8")
e(f"s_mul_i32 s66, s2, {ROTM}")
e("s_and_b32 s66, s66, 63")
e("s_lshl_b32 s76, s66, 13")
e("s_add_u32 s66, s76, s75")
e("s_mov_b32 s67, 0")
def dma(srdb):
    for half in range(2):
        if half:
            e("s_add_u32 m0, s67, 4096")
            e("s_add_u32 s68, s66, 4096")
        else:
            e("s_mov_b32 m0, s67")
            e("s_nop 0")
        so = 68 if half else 66
        for n in range(4):
            e(f"buffer_load_dwordx4 v{9 if (n & 1) else 8}, s[{srdb}:{srdb+3}], s{so} offen offset:{n*1024} nt lds")
    e("s_add_u32 s67, s67, 8192")
    e("s_and_b32 s67, s67, 0x1ffff")
def adv():
    e("s_add_u32 s76, s76, 8192")
    e("s_and_b32 s76, s76, 0x7ffff")
    e("s_add_u32 s66, s76, s75")
assert D % 2 == 0
for n in range(D0):
    dma(52 if n % 2 == 0 else 56)
    if n % 2: adv()
e("v_lshlrev_b32 v15, 2, v1")
e(f"v_add_u32 v15, {LB}, v15")
e("v_mov_b32 v16, 0")
e("ds_write_b32 v15, v16")
e("s_waitcnt lgkmcnt(0)")
e("s_barrier")
e(f"s_mov_b32 s69, {D0 - D}")
e(f"s_mov_b32 s70, {D0//2}")
lab("L_loop")
for kv in range(2):
    e(f"s_waitcnt vmcnt({(D-1)*8})")
    e("s_add_u32 s69, s69, 1")
    e("v_mov_b32 v16, s69")
    e(f"ds_write_b32 v24, v16 offset:{F_LANDED-LB}")
    if kv == 0 and not PURE:
        sk = uid("LF")
        e("s_cmp_lt_u32 s70, 8")
        e(f"s_cbranch_scc1 {sk}")
        e("s_and_b32 s71, s70, 3")
        e("s_lshl_b32 s71, s71, 2")
        e(f"s_add_u32 s71, s71, {F_CONS}")
        e("v_mov_b32 v17, s71")
        e("s_lshr_b32 s72, s70, 2")
        e("s_sub_u32 s72, s72, 1")
        lds_wait_ge(17, 0, "s72", 18, 73, sleep=1)
        lab(sk)
    dma(52 if kv == 0 else 56)
adv()
e("s_add_u32 s70, s70, 1")
if STAMP:
    for si, cnt in ((1, 8), (2, 16), (4, 32), (5, 64), (6, 96)):
        sk = uid("LS")
        e(f"s_cmp_lg_u32 s69, {cnt}")
        e(f"s_cbranch_scc1 {sk}")
        stamp(si)
        lab(sk)
e(f"s_cmp_lt_u32 s70, {64 if PURE else SST}")
e("s_cbranch_scc1 L_loop")
if not PURE:
    e(f"s_sub_u32 s77, s70, {SST - 1}")
    lds_wait_ge(24, F_TQN-LB, "s77", 18, 73, sleep=1)
    e("s_lshl_b32 s71, s77, 2")
    e(f"s_add_u32 s71, s71, {L_TQ - 4}")
    e("v_mov_b32 v17, s71")
    e("ds_read_b32 v18, v17")
    e("v_mov_b32 v16, s77")
    e(f"ds_write_b32 v24, v16 offset:{F_LIDX-LB}")
    e("s_waitcnt lgkmcnt(0)")
    e("v_readfirstlane_b32 s71, v18")
    e("s_nop 0")
    e(f"s_cmp_ge_u32 s71, {POOL}")
    e("s_cbranch_scc1 L_done")
    e("s_and_b32 s72, s71, 15")
    e("s_lshr_b32 s71, s71, 4")
    e(f"s_lshl_b32 s73, s29, {GSH}")
    e(f"s_lshl_b32 s74, s72, {MSH}")
    e("s_add_u32 s73, s73, s74")
    e(f"s_mul_i32 s73, s73, {ROTM}")
    e("s_add_u32 s73, s73, s71")
    e(f"s_add_u32 s73, s73, {SST}")
    e("s_and_b32 s73, s73, 63")
    e("s_lshl_b32 s73, s73, 13")
    e("s_lshl_b32 s72, s72, 19")
    e("s_add_u32 s66, s72, s73")
    e("s_branch L_loop")
    lab("L_done")
    e("s_lshl_b32 s71, s70, 1")
    e("v_mov_b32 v16, s71")
    e(f"ds_write_b32 v24, v16 offset:{F_TOTAL-LB}")
wo_loads()
for j in range(D):
    e(f"s_waitcnt vmcnt({(D-1-j)*8 + 4})")
    e("s_add_u32 s69, s69, 1")
    e("v_mov_b32 v16, s69")
    e(f"ds_write_b32 v24, v16 offset:{F_LANDED-LB}")
e("s_waitcnt lgkmcnt(0)")
stamp(3)
e("s_branch DONE" if PURE else "s_branch HI_TAIL")

lab("ROLE_H")
if PURE: e("s_branch DONE")
e("s_cmp_lg_u32 s28, 5")
e("s_cbranch_scc1 ROLE_H67")
e("v_lshlrev_b32 v10, 4, v1")
e("s_lshl_b32 s71, s2, 10")
e(f"s_add_u32 s71, s71, {WS_QI}")
e("v_mov_b32 v16, -1"); e("v_mov_b32 v17, -1"); e("v_mov_b32 v18, -1"); e("v_mov_b32 v19, -1")
e("buffer_store_dwordx4 v[16:19], v10, s[36:39], s71 offen sc1")
e("s_barrier")
e("v_and_b32 v13, 3, v1")
e("v_lshlrev_b32 v13, 4, v13")
e("v_lshrrev_b32 v11, 2, v1")
e(f"v_lshlrev_b32 v11, {10+MSH}, v11")
e("v_add_u32 v11, v11, v13")
e(f"s_lshl_b32 s72, s29, {10+GSH}")
e("s_lshl_b32 s73, s30, 6")
e("s_add_u32 s72, s72, s73")
e(f"s_add_u32 s72, s72, {WS_QI}")
e("v_mov_b32 v15, 1")
lds_wait_ge(24, F_QCNT-LB, 4, 16, 33, sleep=0)
e("v_lshlrev_b32 v12, 3, v2")
e(f"v_add_u32 v12, {L_QP}, v12")
for w in range(4):
    e(f"ds_read_b64 v[{16+2*w}:{17+2*w}], v12 offset:{w*128}")
e("s_waitcnt lgkmcnt(0)")
e("v_add_f32 v16, v16, v18"); e("v_add_f32 v17, v17, v19")
e("v_add_f32 v20, v20, v22"); e("v_add_f32 v21, v21, v23")
e("v_add_f32 v16, v16, v20"); e("v_add_f32 v17, v17, v21")
e("v_cvt_pk_bf16_f32 v16, v16, v17")
e("v_lshlrev_b32 v12, 2, v2")
e(f"v_add_u32 v12, {L_Q}, v12")
e("ds_write_b32 v12, v16")
e(f"v_add_u32 v12, {L_Q}, v13")
e("s_waitcnt lgkmcnt(0)")
e("ds_read_b128 v[20:23], v12")
e("s_waitcnt vmcnt(0) lgkmcnt(0)")
e("buffer_store_dwordx4 v[20:23], v11, s[36:39], s72 offen sc1")
stamp(4)
poll_loads(lambda: e("buffer_load_dwordx4 v[16:19], v10, s[36:39], s71 offen sc1"), [16,17,18,19], 26, 66)
e(f"v_add_u32 v13, {L_Q}, v10")
e("ds_write_b128 v13, v[16:19]")
e("s_waitcnt lgkmcnt(0)")
e(f"ds_write_b32 v24, v15 offset:{F_QRDY-LB}")
e("buffer_store_dwordx4 v[20:23], v11, s[36:39], s72 offen sc1")
e("s_waitcnt lgkmcnt(0)")
srd(40, 24, 25, 256)
e("v_mov_b32 v8, -1"); e("v_mov_b32 v9, -1"); e("v_mov_b32 v10, -1"); e("v_mov_b32 v11, -1")
e("v_lshlrev_b32 v12, 4, v1")
e("s_add_u32 s33, s34, 4096")
for i in range(4):
    e(f"buffer_store_dwordx4 v[8:11], v12, s[36:39], s34 offen offset:{i*1024} sc1")
e("buffer_store_dwordx4 v[8:11], v12, s[36:39], s33 offen sc1")
e("s_lshl_b32 s78, s29, 8")
e(f"s_add_u32 s78, s78, {WS_TK}")
e("v_mov_b32 v27, 0")
e("s_cmp_lg_u32 s30, 0")
e("s_cbranch_scc1 H5_notlead")
e("buffer_store_dword v27, v27, s[36:39], s78 offen sc1")
lab("H5_notlead")
e("s_and_b32 s83, s29, 3")
e("s_lshl_b32 s83, s83, 6")
e("s_and_b32 s33, s29, 12")
e("s_add_u32 s83, s83, s33")
e("v_mov_b32 v13, s83")
e("v_mov_b32 v14, 1")
e("s_waitcnt vmcnt(0)")
e("v_cmp_eq_u32 vcc, 0, v1")
e("s_and_saveexec_b64 s[64:65], vcc")
e("buffer_atomic_add v14, v13, s[40:43], 0 offen")
e("s_mov_b64 exec, s[64:65]")
wo_loads()
stamp(1)
lds_wait_ge(24, F_LANDED-LB, 32, 25, 33, sleep=8)
wait_all_counters(25, 26, 66)
e("v_mov_b32 v25, 1")
e(f"ds_write_b32 v24, v25 offset:{F_ALLC-LB}")
e("s_waitcnt lgkmcnt(0)")
stamp(2)
lds_wait_ge(24, F_LANDED-LB, 2*(SST-8), 25, 33, sleep=8)
AH = int(os.environ.get("AH", "2"))
e("s_mov_b32 s79, 0")
e("s_mov_b32 s80, 0")
e("s_mov_b32 s77, 0")
e("s_mov_b64 s[64:65], exec")
e("s_mov_b64 exec, 1")
lab("A_loop")
e(f"ds_read_b32 v25, v24 offset:{F_LIDX-LB}")
e("s_waitcnt lgkmcnt(0)")
e("v_readfirstlane_b32 s81, v25")
e("s_nop 0")
e(f"s_add_u32 s33, s81, {AH}")
e("s_min_u32 s33, s33, 46")
e("s_cmp_ge_u32 s79, s33")
e("s_cbranch_scc1 A_pub")
e("s_and_b32 s33, s79, 3")
e("s_lshl_b64 exec, 1, s33")
e("v_mov_b32 v29, 1")
e("buffer_atomic_add v29, v27, s[36:39], s78 offen sc0")
e("s_mov_b64 exec, 1")
e("s_add_u32 s79, s79, 1")
e("s_branch A_loop")
lab("A_pub")
e("s_cmp_ge_u32 s80, s79")
e("s_cbranch_scc1 A_idle")
e("s_sub_u32 s33, s79, s80")
e("s_cmp_ge_u32 s33, 3")
e("s_cbranch_scc1 A_w2")
e("s_cmp_ge_u32 s33, 2")
e("s_cbranch_scc1 A_w1")
e("s_waitcnt vmcnt(0)")
lab("A_w1")
e("s_waitcnt vmcnt(1)")
lab("A_w2")
e("s_waitcnt vmcnt(2)")
e("s_and_b32 s33, s80, 3")
e("v_readlane_b32 s76, v29, s33")
e("s_lshl_b32 s33, s80, 2")
e(f"s_add_u32 s33, s33, {L_TQ}")
e("v_mov_b32 v30, s33")
e("v_mov_b32 v31, s76")
e("ds_write_b32 v30, v31")
e("s_add_u32 s80, s80, 1")
e("v_mov_b32 v31, s80")
e("s_waitcnt lgkmcnt(0)")
e(f"ds_write_b32 v24, v31 offset:{F_TQN-LB}")
e(f"s_cmp_ge_u32 s76, {POOL}")
e("s_cbranch_scc1 A_done")
e("s_branch A_loop")
lab("A_idle")
e("s_cmp_ge_u32 s80, 46")
e("s_cbranch_scc1 A_full")
e("s_sleep 1")
e("s_add_u32 s77, s77, 1")
e("s_cmp_lt_u32 s77, 0x800000")
e("s_cbranch_scc1 A_loop")
lab("A_full")
e("s_lshl_b32 s33, s80, 2")
e(f"s_add_u32 s33, s33, {L_TQ}")
e("v_mov_b32 v30, s33")
e("v_mov_b32 v31, -1")
e("ds_write_b32 v30, v31")
e("s_add_u32 s80, s80, 1")
e("v_mov_b32 v31, s80")
e("s_waitcnt lgkmcnt(0)")
e(f"ds_write_b32 v24, v31 offset:{F_TQN-LB}")
lab("A_done")
e("s_waitcnt lgkmcnt(0)")
e("s_mov_b64 exec, s[64:65]")
stamp(3)
e("s_branch HI_TAIL")

lab("ROLE_H67")
e("s_barrier")
if ABL >= 1: e("s_branch HI_TAIL")
lds_wait_ge(24, F_QRDY-LB, 1, 25, 33, sleep=4)
wo_loads()
e("v_lshrrev_b32 v8, 3, v1")
e("v_and_b32 v9, 7, v1")
e("s_sub_u32 s74, s28, 6")
e("s_cmp_ge_u32 s2, 224")
e("s_cbranch_scc1 H67_noffn1")
e("s_cmp_eq_u32 s28, 6")
e("s_cselect_b32 s52, s16, s18")
e("s_cselect_b32 s53, s17, s19")
e(f"s_mov_b32 s54, {512*1792*2}")
e("s_mov_b32 s55, 0x00020000")
e("v_lshlrev_b32 v12, 4, v1")
e("buffer_load_dwordx4 v[16:19], v12, s[44:47], 0 offen")
e("buffer_load_dwordx4 v[20:23], v12, s[44:47], 0 offen offset:1024")
e("v_mul_u32_u24 v10, 28672, v8")
e("v_lshl_add_u32 v10, v9, 4, v10")
e("s_lshr_b32 s64, s2, 3")
e("s_lshl_b32 s64, s64, 7")
e("s_and_b32 s81, s2, 7")
e("s_mul_i32 s65, s81, 229376")
e("s_add_u32 s66, s64, s65")
for i in range(8):
    if i: e("s_add_u32 s66, s66, 3584")
    e(f"buffer_load_dwordx4 v[{64+4*i}:{67+4*i}], v10, s[52:55], s66 offen nt")
e("s_waitcnt vmcnt(8)")
layernorm(2, 16, 128, 144)
e("s_lshl_b32 s64, s81, 3")
e("v_add_u32 v12, s64, v8")
e("v_lshlrev_b32 v12, 2, v12")
for i in range(16):
    e(f"ds_bpermute_b32 v{160+i}, v12, v{128+i}")
    if i == 7: e("s_waitcnt lgkmcnt(4)")
for i in range(16):
    e(f"v_mov_b32 v{96+i}, 0")
e("s_waitcnt lgkmcnt(0)")
for i in range(16):
    e(f"v_lshlrev_b32 v{176+i}, 16, v{160+i}")
e("s_waitcnt vmcnt(0)")
for i in range(8):
    for j in range(4):
        w = 64 + 4*i + j
        for b in range(2):
            a = 96 + 8*b + 2*j
            e(f"v_dot2_f32_bf16 v{a}, v{w}, v{160+8*b+i}, v{a}")
            e(f"v_dot2_f32_bf16 v{a+1}, v{w}, v{176+8*b+i}, v{a+1}")
red16(96)
red16_addr(11, 12, 9)
lds_wait_ge(24, F_ALLC-LB, 1, 25, 33, sleep=8)
e("s_lshl_b32 s66, s74, 9")
e("s_add_u32 s66, s66, s34")
e(f"s_add_u32 s66, s66, {R_P}")
e("v_and_b32 v12, 8, v1")
e("v_cmp_eq_u32 vcc, 0, v12")
e("s_and_saveexec_b64 s[64:65], vcc")
e("buffer_store_dwordx4 v[96:99], v11, s[36:39], s66 offen sc1")
e("s_mov_b64 exec, s[64:65]")
stamp(1)
lab("H67_noffn1")
e("s_and_b32 s64, s2, 31")
e("s_cmp_ge_u32 s64, 28")
e("s_cbranch_scc1 H6_fred")
srd(52, 20, 21, 1792*512*2)
e("v_lshlrev_b32 v10, 12, v8")
e("v_lshl_add_u32 v10, v9, 4, v10")
e("s_lshl_b32 s66, s64, 16")
e("s_lshl_b32 s67, s74, 15")
e("s_add_u32 s66, s66, s67")
e("s_add_u32 s66, s66, s63")
for i in range(4):
    e(f"buffer_load_dwordx4 v[{48+4*i}:{51+4*i}], v10, s[52:55], s66 offen offset:{i*1024} nt")
lds_wait_ge(24, F_ALLC-LB, 1, 25, 33, sleep=8)
lds_wait_ge(24, F_LANDED-LB, PGATE, 25, 33, sleep=8)
e("v_lshlrev_b32 v11, 4, v8")
e(f"s_lshl_b32 s66, s64, {RSH+3}")
e("s_lshl_b32 s67, s74, 7")
e("s_add_u32 s66, s66, s67")
e(f"s_add_u32 s66, s66, {R_P}")
for rb in range(1, 8):
    e(f"v_add_u32 v{200+rb}, {rb << RSH}, v11")
def p_issue():
    for rb in range(8):
        for mb in range(4):
            r = 64 + (rb*4+mb)*4
            e(f"buffer_load_dwordx4 v[{r}:{r+3}], v{11 if rb == 0 else 200+rb}, s[36:39], s66 offen offset:{mb*256} sc1")
poll_loads(p_issue, list(range(64, 192)), 28, 68, sleep=48)
for rb in range(1, 8):
    for k in range(16):
        e(f"v_add_f32 v{64+k}, v{64+k}, v{64+rb*16+k}")
for k in range(8):
    round_pair(64+k, 72+k, 96)
    silu(97, 64+k, 98, 99)
    e("v_cvt_pk_bf16_f32 v96, v97, v97")
    e("v_lshlrev_b32 v97, 16, v96")
    e(f"v_mul_f32 v97, v97, v{72+k}")
    e("v_cvt_pk_bf16_f32 v96, v97, v97")
    e(f"v_and_b32 v{80+2*k}, 0xffff, v96")
    e(f"v_lshlrev_b32 v{81+2*k}, 16, v96")
for i in range(16):
    e(f"v_mov_b32 v{96+i}, 0")
for i in range(4):
    for j in range(4):
        w = 48 + 4*i + j
        for b in range(2):
            a = 96 + 8*b + 2*j
            e(f"v_dot2_f32_bf16 v{a}, v{w}, v{80+b*8+2*i}, v{a}")
            e(f"v_dot2_f32_bf16 v{a+1}, v{w}, v{81+b*8+2*i}, v{a+1}")
red16(96)
red16_addr(11, 12, 9)
e("s_lshl_b32 s66, s74, 9")
e("s_add_u32 s66, s66, s34")
e("v_and_b32 v12, 8, v1")
e("v_cmp_eq_u32 vcc, 0, v12")
e("s_and_saveexec_b64 s[64:65], vcc")
e(f"buffer_store_dwordx4 v[96:99], v11, s[36:39], s66 offen offset:{R_F} sc1")
e("s_mov_b64 exec, s[64:65]")
stamp(3)
e("s_branch HI_TAIL")
lab("H6_fred")
e("s_cmp_lg_u32 s64, 28")
e("s_cbranch_scc1 HI_TAIL")
e("s_cmp_lg_u32 s28, 6")
e("s_cbranch_scc1 HI_TAIL")
lds_wait_ge(24, F_ALLC-LB, 1, 25, 33, sleep=8)
lds_wait_ge(24, F_LANDED-LB, FGATE, 25, 33, sleep=8)
e("v_lshlrev_b32 v13, 3, v1")
e(f"s_lshl_b32 s33, s35, {RSH+5}")
for hh in range(1, 28):
    e(f"v_add_u32 v{200+hh}, {hh << RSH}, v13")
def fr_issue():
    for hh in range(28):
        for pt in range(2):
            r = 64 + (hh*2+pt)*2
            e(f"buffer_load_dwordx2 v[{r}:{r+1}], v{13 if hh == 0 else 200+hh}, s[36:39], s33 offen offset:{R_F + pt*512} sc1")
poll_loads(fr_issue, list(range(64, 176)), 28, 66, sleep=64)
for k in range(1, 56):
    e(f"v_add_f32 v64, v64, v{64+2*k}")
    e(f"v_add_f32 v65, v65, v{65+2*k}")
round_pair(64, 65, 66)
silu(68, 64, 70, 71)
silu(69, 65, 70, 71)
round_pair(68, 69, 66)
e(f"v_add_u32 v13, {L_G}, v13")
e("ds_write_b64 v13, v[68:69]")
e("s_waitcnt lgkmcnt(0)")
stamp(3)
e("s_branch HI_TAIL")


lab("HI_TAIL")
e("s_waitcnt vmcnt(0)")
e("v_lshlrev_b32 v8, 4, v5")
e(f"v_add_u32 v8, {L_OL}, v8")
for i in range(16):
    e(f"v_mov_b32 v{96+i}, 0")
red16_addr(11, 12, 6)
e("s_sub_u32 s33, s28, 4")
e("s_lshl_b32 s33, s33, 9")
e(f"s_add_u32 s33, s33, {L_RED}")
e("v_add_u32 v11, s33, v11")
e("s_barrier")
e("s_barrier")
e("ds_read_b128 v[16:19], v8")
e("ds_read_b128 v[20:23], v8 offset:512")
e("s_waitcnt lgkmcnt(0)")
for i in range(8):
    e(f"v_lshlrev_b32 v{24+i}, 16, v{16+i}")
for i in range(4):
    for j in range(4):
        w = 32 + 4*i + j
        for b in range(2):
            a = 96 + 8*b + 2*j
            e(f"v_dot2_f32_bf16 v{a}, v{w}, v{16+b*4+i}, v{a}")
            e(f"v_dot2_f32_bf16 v{a+1}, v{w}, v{24+b*4+i}, v{a+1}")
red16(96)
e("v_and_b32 v12, 8, v1")
e("v_cmp_eq_u32 vcc, 0, v12")
e("s_and_saveexec_b64 s[64:65], vcc")
e("ds_write_b128 v11, v[96:99]")
e("s_mov_b64 exec, s[64:65]")
e("s_waitcnt lgkmcnt(0)")
e("s_barrier")
e("s_cmp_ge_u32 s28, 6")
e("s_cbranch_scc1 DONE")
e("v_lshlrev_b32 v12, 2, v4")
e(f"v_add_u32 v13, {L_RED}, v12")
for w in range(4):
    e(f"ds_read_b32 v{16+w}, v13 offset:{w*512}")
e("s_waitcnt lgkmcnt(0)")
e("v_add_f32 v16, v16, v17")
e("v_add_f32 v18, v18, v19")
e("v_add_f32 v16, v16, v18")
e(f"buffer_store_dword v16, v12, s[36:39], s34 offen offset:{R_S} sc1")
lab("DONE")
if STAMP:
    e("s_mov_b64 exec, -1")
    e("s_cmp_ge_u32 s2, 256")
    e("s_cbranch_scc1 DONE2")
    stamp(7)
    e("s_waitcnt lgkmcnt(0) vmcnt(0)")
    for i in range(8):
        e(f"v_mov_b32 v{8+i}, s{84+2*i}")
    e("s_lshl_b32 s33, s2, 8")
    e("s_lshl_b32 s34, s28, 5")
    e("s_add_u32 s33, s33, s34")
    e(f"s_add_u32 s33, s33, {STAMP_OFF}")
    e("v_mov_b32 v4, s33")
    e("v_and_b32 v5, 63, v0")
    e("v_cmp_eq_u32 vcc, 0, v5")
    e("s_and_saveexec_b64 s[64:65], vcc")
    e("buffer_store_dwordx4 v[8:11], v4, s[36:39], 0 offen")
    e("buffer_store_dwordx4 v[12:15], v4, s[36:39], 0 offen offset:16")
    if STAMP == 2:
        srd(40, 24, 25, 256)
        e("v_mov_b32 v20, 16"); e("buffer_atomic_umax v15, v20, s[40:43], 0 offen")
        e("v_not_b32 v21, v8"); e("v_mov_b32 v20, 20"); e("buffer_atomic_umax v21, v20, s[40:43], 0 offen")
        e("s_cmp_lg_u32 s28, 4"); e("s_cbranch_scc1 DG1")
        e("v_mov_b32 v20, 24"); e("buffer_atomic_umax v11, v20, s[40:43], 0 offen")
        e("v_mov_b32 v20, 32"); e("buffer_atomic_umax v10, v20, s[40:43], 0 offen")
        e("v_not_b32 v21, v11"); e("v_mov_b32 v20, 36"); e("buffer_atomic_umax v21, v20, s[40:43], 0 offen")
        e("v_mov_b32 v20, 40"); e("buffer_atomic_umax v13, v20, s[40:43], 0 offen")
        lab("DG1")
        e("s_cmp_lg_u32 s28, 0"); e("s_cbranch_scc1 DG2")
        e("v_mov_b32 v20, 28"); e("buffer_atomic_umax v10, v20, s[40:43], 0 offen")
        e("v_mov_b32 v20, 44"); e("buffer_atomic_umax v8, v20, s[40:43], 0 offen")
        lab("DG2")
    lab("DONE2")
e("s_endpgm")
raw('.section .rodata,"a"')
raw(".p2align 6")
raw(f".amdhsa_kernel {KNAME}")
raw("  .amdhsa_next_free_vgpr 248")
raw("  .amdhsa_next_free_sgpr 100")
raw("  .amdhsa_accum_offset 248")
raw("  .amdhsa_group_segment_fixed_size 0")
raw("  .amdhsa_kernarg_size 96")
raw("  .amdhsa_user_sgpr_count 2")
raw("  .amdhsa_user_sgpr_kernarg_segment_ptr 1")
raw("  .amdhsa_system_sgpr_workgroup_id_x 1")
raw("  .amdhsa_float_denorm_mode_32 3")
raw(".end_amdhsa_kernel")
hdr = open(f"cdna_kernels/{NAME}.s.ref").read().split("\n")
head = [l for l in hdr if l.startswith(";") and "@launch" not in l]
out = head + [f"; @launch grid=(256,1,1) block=(512,1,1) lds={LDS_TOTAL}",
              '.amdgcn_target "amdgcn-amd-amdhsa--gfx950"', ".text"]
dst = sys.argv[1] if len(sys.argv) > 1 else f"cdna_kernels/{NAME}.s"
open(dst, "w").write("\n".join(out + L) + "\n")
print("wrote", dst, len(L), "lines; LDS", LDS_TOTAL)
```

```python
import sys, os
NAME = "recurrent_scan__gqa_block_cached__glu_gated_swiglu__decode"
STAMP = int(os.environ.get("STAMP", "0"))
PURE = int(os.environ.get("PURE", "0"))
D = int(os.environ.get("D", "4"))
ROTM = int(os.environ.get("ROTM", "1"))
SST = int(os.environ.get("SST", "54"))
POOL = 16 * (64 - SST)
ABL = int(os.environ.get("ABL", "0"))
POL = os.environ.get("POL", "nt")
POLV = os.environ.get("POLV", POL)
PRIO = int(os.environ.get("PRIO", "2"))
D0 = int(os.environ.get("D0", "4"))
MAP = int(os.environ.get("MAP", "1"))
GSH, MSH = (4, 0) if MAP else (0, 4)
LA = int(os.environ.get("LA", "2"))
PGATE = int(os.environ.get("PGATE", "56"))
FGATE = int(os.environ.get("FGATE", "80"))
LOG2E = 0x3fb8aa3b
SCALE = 0x3db504f3
EPS   = 0x3727c5ac
SPIN_MAX = 400000
RSH = 13
R_O = 0; R_ML = 2048; R_S = 2560; R_F = 3072; R_P = 4096
WS_QI = 256 << RSH
WS_TK = WS_QI + 256 * 1024
WS_USED = WS_TK + 16 * 256
STAMP_OFF = 0x300000
LB = 131072
F_LANDED = LB + 0; F_CONS = LB + 16; F_QCNT = LB + 32; F_QRDY = LB + 36; F_ALLC = LB + 40; F_CLR = LB + 48; F_TOTAL = LB + 4; F_TQN = LB + 52; F_LIDX = LB + 56
L_TQ = LB + 64
L_XN = LB + 256
L_QP = LB + 2304
L_Q = LB + 3072
L_CMB = LB + 4096
L_OL = L_CMB + 4*2304
L_RED = L_OL + 1024
L_G = L_RED + 2048
LDS_TOTAL = L_G + 512

L = []
def e(s): L.append("    " + s)
def lab(s): L.append(s + ":")
def raw(s): L.append(s)
_uid = [0]
def uid(p):
    _uid[0] += 1
    return f"{p}_{_uid[0]}"
def srd(d, lo, hi, nrec):
    e(f"s_mov_b32 s{d}, s{lo}")
    e(f"s_mov_b32 s{d+1}, s{hi}")
    e(f"s_mov_b32 s{d+2}, {nrec}")
    e(f"s_mov_b32 s{d+3}, 0x00020000")
DPPM = "row_mask:0xf bank_mask:0xf"
def dpp_steps(op, regs, ctrls):
    for ctrl in ctrls:
        e("s_nop 1")
        for v in regs:
            e(f"v_{op}_f32_dpp v{v}, v{v}, v{v} {ctrl} {DPPM}")
ROWCTR = ("quad_perm:[1,0,3,2]", "quad_perm:[2,3,0,1]", "row_ror:4", "row_ror:8")
def cross_rows(op, regs, tmps):
    for sw in ("v_permlane16_swap_b32", "v_permlane32_swap_b32"):
        for v, t in zip(regs, tmps):
            e(f"v_mov_b32 v{t}, v{v}")
        e("s_nop 1")
        for v, t in zip(regs, tmps):
            e(f"{sw} v{v}, v{t}")
        e("s_nop 0")
        for v, t in zip(regs, tmps):
            e(f"v_{op}_f32 v{v}, v{v}, v{t}")
def allreduce(op, regs, tmps):
    dpp_steps(op, regs, ROWCTR)
    cross_rows(op, regs, tmps)
def swap_add(sw, pairs):
    e("s_nop 1")
    for a, b in pairs:
        e(f"{sw} v{a}, v{b}")
    e("s_nop 0")
    for a, b in pairs:
        e(f"v_add_f32 v{a}, v{a}, v{b}")
def unpack(dlo, dhi, src):
    e(f"v_lshlrev_b32 v{dlo}, 16, v{src}")
    e(f"v_and_b32 v{dhi}, 0xffff0000, v{src}")
def round_pair(a, b, t):
    e(f"v_cvt_pk_bf16_f32 v{t}, v{a}, v{b}")
    unpack(a, b, t)
def stamp(i):
    if STAMP:
        e(f"s_memrealtime s[{84+2*i}:{85+2*i}]")

def layernorm(nb, xa, o0, t0):
    f = o0
    B = range(nb)
    for b in B:
        for j in range(4):
            unpack(f + b*8 + 2*j, f + b*8 + 2*j + 1, xa + b*4 + j)
    S = [t0, t0+1][:nb]; U = [t0+2, t0+3][:nb]; Q = [t0+4, t0+5][:nb]; d = t0+6; R = [t0+7, t0+8][:nb]
    for b in B:
        e(f"v_add_f32 v{S[b]}, v{f+b*8}, v{f+b*8+1}")
        for j in range(2, 8):
            e(f"v_add_f32 v{S[b]}, v{S[b]}, v{f+b*8+j}")
    allreduce("add", S, U)
    for b in B: e(f"v_mul_f32 v{S[b]}, 0x3b000000, v{S[b]}")
    for b in B:
        e(f"v_sub_f32 v{d}, v{f+b*8}, v{S[b]}")
        e(f"v_mul_f32 v{Q[b]}, v{d}, v{d}")
        for j in range(1, 8):
            e(f"v_sub_f32 v{d}, v{f+b*8+j}, v{S[b]}")
            e(f"v_fmac_f32 v{Q[b]}, v{d}, v{d}")
    allreduce("add", Q, U)
    for b in B: e(f"v_mul_f32 v{Q[b]}, 0x3b000000, v{Q[b]}")
    for b in B:
        round_pair(S[b], Q[b], d)
        e(f"v_add_f32 v{Q[b]}, {EPS:#x}, v{Q[b]}")
        e(f"v_cvt_pk_bf16_f32 v{d}, v{Q[b]}, v{Q[b]}")
        e(f"v_lshlrev_b32 v{Q[b]}, 16, v{d}")
        e(f"v_sqrt_f32 v{Q[b]}, v{Q[b]}")
        e("s_nop 0")
        e(f"v_cvt_pk_bf16_f32 v{d}, v{Q[b]}, v{Q[b]}")
        e(f"v_lshlrev_b32 v{Q[b]}, 16, v{d}")
        e(f"v_rcp_f32 v{R[b]}, v{Q[b]}")
    e("s_nop 0")
    ta, tb, tc, td = t0+9, t0+10, t0+11, t0+12
    for b in B:
        s, q, r = S[b], Q[b], R[b]
        for j in range(0, 8, 2):
            a0, a1 = f+b*8+j, f+b*8+j+1
            e(f"v_sub_f32 v{a0}, v{a0}, v{s}")
            e(f"v_sub_f32 v{a1}, v{a1}, v{s}")
            round_pair(a0, a1, d)
            e(f"v_mul_f32 v{ta}, v{a0}, v{r}")
            e(f"v_mul_f32 v{tb}, v{a1}, v{r}")
            e(f"v_fma_f32 v{tc}, -v{ta}, v{q}, v{a0}")
            e(f"v_fma_f32 v{td}, -v{tb}, v{q}, v{a1}")
            e(f"v_fmac_f32 v{ta}, v{tc}, v{r}")
            e(f"v_fmac_f32 v{tb}, v{td}, v{r}")
            e(f"v_cvt_pk_bf16_f32 v{d}, v{ta}, v{tb}")
            e(f"v_and_b32 v{a0}, 0xffff, v{d}")
            e(f"v_lshrrev_b32 v{a1}, 16, v{d}")

def silu(dst, src, t1, t2):
    e(f"v_mul_f32 v{t1}, 0xbfb8aa3b, v{src}")
    e(f"v_exp_f32 v{t1}, v{t1}")
    e("s_nop 0")
    e(f"v_add_f32 v{t1}, 1.0, v{t1}")
    e(f"v_rcp_f32 v{t2}, v{t1}")
    e("s_nop 0")
    e(f"v_mul_f32 v{dst}, v{src}, v{t2}")

def lds_wait_ge(vaddr, off, need, vt, st, sleep=1):
    l0, l1 = uid("LW"), uid("LG")
    e("s_mov_b32 s82, 0")
    lab(l0)
    e(f"ds_read_b32 v{vt}, v{vaddr} offset:{off}")
    e("s_waitcnt lgkmcnt(0)")
    e(f"v_readfirstlane_b32 s{st}, v{vt}")
    e("s_add_u32 s82, s82, 1")
    e(f"s_cmp_ge_u32 s{st}, {need}")
    e(f"s_cbranch_scc1 {l1}")
    e(f"s_sleep {sleep}")
    e("s_cmp_lt_u32 s82, 0x800000")
    e(f"s_cbranch_scc1 {l0}")
    lab(l1)

def poll_loads(issue, regs, vt, scnt, sleep=None):
    l0, l1 = uid("PL"), uid("PG")
    e(f"s_mov_b32 s{scnt}, 0")
    lab(l0)
    issue()
    e("s_waitcnt vmcnt(0)")
    rs = list(regs)
    e(f"v_mov_b32 v{vt}, v{rs[0]}")
    i = 1
    while i < len(rs):
        if i + 1 < len(rs):
            e(f"v_max3_u32 v{vt}, v{vt}, v{rs[i]}, v{rs[i+1]}"); i += 2
        else:
            e(f"v_max_u32 v{vt}, v{vt}, v{rs[i]}"); i += 1
    e(f"v_cmp_eq_u32 vcc, -1, v{vt}")
    e(f"s_add_u32 s{scnt}, s{scnt}, 1")
    e("s_cmp_eq_u64 vcc, 0")
    e(f"s_cbranch_scc1 {l1}")
    if sleep is not None: e(f"s_sleep {sleep}")
    e(f"s_cmp_lt_u32 s{scnt}, {SPIN_MAX}")
    e(f"s_cbranch_scc1 {l0}")
    lab(l1)

def wait_all_counters(vt, va, scnt):
    l0, l1 = uid("WC"), uid("WG")
    e(f"v_and_b32 v{va}, 3, v1")
    e(f"v_lshlrev_b32 v{va}, 6, v{va}")
    e(f"v_and_b32 v{vt}, 12, v1")
    e(f"v_add_u32 v{va}, v{va}, v{vt}")
    e(f"s_mov_b32 s{scnt}, 0")
    lab(l0)
    e(f"buffer_load_dword v{vt}, v{va}, s[40:43], 0 offen sc1")
    e("s_waitcnt vmcnt(0)")
    e(f"v_cmp_gt_u32 vcc, 16, v{vt}")
    e(f"s_add_u32 s{scnt}, s{scnt}, 1")
    e("s_cmp_eq_u64 vcc, 0")
    e(f"s_cbranch_scc1 {l1}")
    e("s_sleep 32")
    e(f"s_cmp_lt_u32 s{scnt}, {SPIN_MAX}")
    e(f"s_cbranch_scc1 {l0}")
    lab(l1)

def red16(acc):
    e("s_nop 3")
    swap_add("v_permlane32_swap_b32", [(acc+j, acc+8+j) for j in range(8)])
    swap_add("v_permlane16_swap_b32", [(acc+j, acc+4+j) for j in range(4)])
    dpp_steps("add", [acc+j for j in range(4)], ("row_ror:8",))

def red16_addr(dst, tmp, cq):
    e(f"v_lshrrev_b32 v{dst}, 1, v3")
    e(f"v_lshlrev_b32 v{dst}, 8, v{dst}")
    e(f"v_and_b32 v{tmp}, 1, v3")
    e(f"v_lshl_add_u32 v{dst}, v{tmp}, 4, v{dst}")
    e(f"v_lshl_add_u32 v{dst}, v{cq}, 5, v{dst}")

KNAME = NAME + "_kernel"
raw(f".globl {KNAME}"); raw(".p2align 8"); raw(f".type {KNAME},@function"); lab(KNAME)
stamp(0)
e("s_cmp_ge_u32 s2, 256")
e("s_cbranch_scc1 DONE")
e("s_load_dwordx16 s[4:19], s[0:1], 0")
e("s_load_dwordx8 s[20:27], s[0:1], 64")
e("v_lshrrev_b32 v1, 6, v0")
e("s_nop 0")
e("v_readfirstlane_b32 s28, v1")
e("v_and_b32 v1, 63, v0")
if MAP:
    e("s_lshr_b32 s29, s2, 4")
    e("s_and_b32 s30, s2, 15")
else:
    e("s_and_b32 s29, s2, 15")
    e("s_lshr_b32 s30, s2, 4")
e("s_lshr_b32 s31, s29, 3")
e("s_and_b32 s32, s29, 7")
e(f"s_lshl_b32 s34, s2, {RSH}")
e("s_lshr_b32 s35, s2, 5")
e("v_and_b32 v2, 15, v1")
e("v_lshrrev_b32 v3, 4, v1")
e("s_cmp_ge_u32 s28, 4")
e("s_waitcnt lgkmcnt(0)")
srd(36, 26, 27, WS_USED if not STAMP else 0x400000)
srd(44, 4, 5, 2048)
e(f"s_mov_b32 s60, {LOG2E:#x}")
e(f"s_mov_b32 s61, {SCALE:#x}")
e("s_cbranch_scc1 ROLE_HI")
if PURE == 1: e("s_branch DONE")
if PURE == 3:
    srd(48, 10, 11, 512*4096*2)
    e("v_lshrrev_b32 v5, 3, v0"); e("v_and_b32 v6, 7, v0")
    e("v_lshlrev_b32 v7, 15, v5"); e("v_lshl_add_u32 v7, v6, 4, v7")
    e("s_lshl_b32 s62, s31, 4"); e("s_add_u32 s62, s62, s30")
    e("s_and_b32 s63, s62, 7"); e("s_lshl_b32 s63, s63, 7")
    e("s_lshr_b32 s62, s62, 3"); e("s_lshl_b32 s62, s62, 20")
    e("s_add_u32 s62, s62, s63"); e("s_lshl_b32 s63, s32, 10"); e("s_add_u32 s62, s62, s63")
    for i in range(4):
        if i: e("s_add_u32 s62, s62, 8192")
        e(f"buffer_load_dwordx4 v[{32+4*i}:{35+4*i}], v7, s[48:51], s62 offen nt")
    e("s_waitcnt vmcnt(0)")
    stamp(1)
    e("s_branch DONE")

srd(48, 10, 11, 512*4096*2)
e("v_lshlrev_b32 v4, 4, v1")
e("s_lshl_b32 s33, s31, 10")
e("buffer_load_dwordx4 v[8:11], v4, s[44:47], s33 offen")
e("v_lshrrev_b32 v5, 2, v0")
e("v_and_b32 v6, 3, v0")
e("v_lshlrev_b32 v7, 16, v5")
e("v_lshl_add_u32 v7, v6, 4, v7")
e("s_lshl_b32 s62, s32, 10")
e("s_lshl_b32 s63, s30, 6")
e("s_add_u32 s62, s62, s63")
WQNT = os.environ.get("WQNT", " nt")
for i in range(8):
    if i: e(f"s_add_u32 s62, s62, 8192")
    e(f"buffer_load_dwordx4 v[{32+4*i}:{35+4*i}], v7, s[48:51], s62 offen{WQNT}")
if PURE == 2:
    e("s_waitcnt vmcnt(0)")
    stamp(1)
    e("s_branch DONE")
e("s_barrier")
e(f"v_mov_b32 v14, {LB}")
e("v_mov_b32 v15, 1")
e("s_waitcnt vmcnt(8)")
layernorm(1, 8, 64, 80)
e("v_lshlrev_b32 v12, 5, v1")
e(f"v_add_u32 v12, {L_XN}, v12")
e("ds_write_b128 v12, v[64:67]")
e("ds_write_b128 v12, v[68:71] offset:16")
e("v_lshlrev_b32 v13, 5, v5")
e(f"v_add_u32 v13, {L_XN}, v13")
e("s_waitcnt lgkmcnt(0)")
e("ds_read_b128 v[64:67], v13")
e("ds_read_b128 v[68:71], v13 offset:16")
for i in range(8):
    e(f"v_mov_b32 v{96+i}, 0")
e("s_waitcnt lgkmcnt(0)")
for i in range(8):
    e(f"v_lshlrev_b32 v{72+i}, 16, v{64+i}")
e("s_waitcnt vmcnt(0)")
for i in range(8):
    for j in range(4):
        w = 32 + 4*i + j
        e(f"v_dot2_f32_bf16 v{96+2*j}, v{w}, v{64+i}, v{96+2*j}")
        e(f"v_dot2_f32_bf16 v{97+2*j}, v{w}, v{72+i}, v{97+2*j}")
e("s_nop 3")
swap_add("v_permlane32_swap_b32", [(96+j, 100+j) for j in range(4)])
swap_add("v_permlane16_swap_b32", [(96+j, 98+j) for j in range(2)])
dpp_steps("add", [96, 97], ("row_ror:4", "row_ror:8"))
e("v_lshlrev_b32 v12, 5, v6")
e("v_lshl_add_u32 v12, v3, 3, v12")
e("s_lshl_b32 s33, s28, 7")
e(f"s_add_u32 s33, s33, {L_QP}")
e("v_add_u32 v12, s33, v12")
e("v_and_b32 v13, 12, v1")
e("v_cmp_eq_u32 vcc, 0, v13")
e("s_and_saveexec_b64 s[64:65], vcc")
e("ds_write_b64 v12, v[96:97]")
e("s_mov_b64 exec, s[64:65]")
e("s_waitcnt lgkmcnt(0)")
e("v_cmp_eq_u32 vcc, 0, v1")
e("s_and_saveexec_b64 s[64:65], vcc")
e(f"ds_add_u32 v14, v15 offset:{F_QCNT-LB}")
e("s_mov_b64 exec, s[64:65]")
lab("C_pre")
if PRIO >= 2: e("s_setprio 2")
e("s_lshl_b32 s33, s28, 14")
e("v_and_b32 v145, 7, v2")
e("v_lshlrev_b32 v145, 1, v145")
e("v_xor_b32 v145, v3, v145")
e("v_lshlrev_b32 v145, 4, v145")
e("v_lshl_add_u32 v145, v2, 8, v145")
e("v_add_u32 v160, s33, v145")
for s in range(1, 4):
    e(f"v_xor_b32 v{160+s}, {s*64}, v160")
for s in range(4):
    e(f"v_add_u32 v{164+s}, 0x10000, v{160+s}")
e("v_bfe_u32 v145, v1, 2, 2")
e("v_lshl_add_u32 v145, v3, 2, v145")
e("v_and_b32 v146, 7, v145")
e("v_lshlrev_b32 v146, 1, v146")
e("v_bfe_u32 v147, v1, 1, 1")
e("v_xor_b32 v146, v146, v147")
e("v_lshlrev_b32 v146, 4, v146")
e("v_lshl_add_u32 v146, v145, 8, v146")
e("v_and_b32 v147, 1, v1")
e("v_lshl_add_u32 v146, v147, 3, v146")
e("v_add_u32 v146, 8192, v146")
e("v_add_u32 v168, s33, v146")
for db in range(1, 8):
    e(f"v_xor_b32 v{168+db}, {db*32}, v168")
for db in range(8):
    e(f"v_add_u32 v{176+db}, 0x10000, v{168+db}")
for i in range(32):
    e(f"v_mov_b32 v{96+i}, 0")
e("v_mov_b32 v140, 0xff800000")
e("v_mov_b32 v141, 0")
e("s_lshl_b32 s66, s28, 1")
e("s_add_u32 s66, s66, 1")
e("s_mov_b32 s67, 0")
e("s_lshl_b32 s33, s28, 2")
e(f"s_add_u32 s33, s33, {F_CONS}")
e("v_mov_b32 v150, s33")
e("s_mov_b32 s68, 0")
KF = (32, 184); VF = (64, 216)
def c_load(p):
    kf, vf = KF[p], VF[p]
    sk = uid("CK"); l0 = uid("CW")
    e("s_cmp_ge_u32 s68, s66")
    e(f"s_cbranch_scc1 {sk}")
    e("s_mov_b32 s82, 0")
    lab(l0)
    e(f"ds_read_b64 v[144:145], v14 offset:{F_LANDED-LB}")
    e("s_waitcnt lgkmcnt(0)")
    e("v_readfirstlane_b32 s68, v144")
    e("v_readfirstlane_b32 s33, v145")
    e("s_add_u32 s82, s82, 1")
    e("s_cmp_ge_u32 s68, s66")
    e(f"s_cbranch_scc1 {sk}")
    e("s_sub_u32 s33, s33, 1")
    e("s_cmp_lt_u32 s33, s66")
    e("s_cbranch_scc1 C_done")
    e("s_sleep 1")
    e("s_cmp_lt_u32 s82, 0x800000")
    e(f"s_cbranch_scc1 {l0}")
    lab(sk)
    for t in range(2):
        for s in range(4):
            r = kf + (t*4+s)*4
            e(f"ds_read_b128 v[{r}:{r+3}], v{160+4*p+s} offset:{t*4096}")
    e("s_add_u32 s66, s66, 1")
    sk = uid("CV")
    e("s_cmp_ge_u32 s68, s66")
    e(f"s_cbranch_scc1 {sk}")
    lds_wait_ge(14, F_LANDED-LB, "s66", 144, 68, sleep=1)
    lab(sk)
    e("s_waitcnt lgkmcnt(4)")
    for db in range(8):
        for t in range(2):
            r = vf + db*4 + t*2
            e(f"ds_read_b64_tr_b16 v[{r}:{r+1}], v{168+8*p+db} offset:{t*4096}")
        if db in (2, 5):
            e("s_waitcnt lgkmcnt(4)")
    e("s_add_u32 s67, s67, 1")
    e("v_mov_b32 v151, s67")
    e("s_add_u32 s66, s66, 7")
    e("s_waitcnt lgkmcnt(0)")
    e("ds_write_b32 v150, v151")
def c_compute(p):
    if ABL >= 2: return
    kf, vf = KF[p], VF[p]
    for s in range(4):
        for t in range(2):
            r = kf + (t*4+s)*4
            d = 128 + 4*t
            c = "0" if s == 0 else f"v[{d}:{d+3}]"
            e(f"v_mfma_f32_16x16x32_bf16 v[{d}:{d+3}], v[{r}:{r+3}], v[{16+4*s}:{19+4*s}], {c}")
    e("s_nop 7")
    e("s_nop 1")
    S = list(range(128, 136))
    for j in range(0, 8, 2):
        round_pair(S[j], S[j+1], 152 + j//2)
    for j in range(8):
        e(f"v_mul_f32 v{S[j]}, s61, v{S[j]}")
    for j in range(0, 8, 2):
        round_pair(S[j], S[j+1], 152 + j//2)
    e("v_max3_f32 v144, v128, v129, v130")
    e("v_max3_f32 v145, v131, v132, v133")
    e("v_max3_f32 v144, v144, v134, v135")
    e("v_max_f32 v144, v144, v145")
    cross_rows("max", [144], [145])
    e("v_max_f32 v144, v144, v140")
    e("v_sub_f32 v145, v140, v144")
    e("v_mul_f32 v145, s60, v145")
    e("v_exp_f32 v145, v145")
    e("v_mov_b32 v140, v144")
    e("v_mul_f32 v146, s60, v144")
    for j in range(8):
        e(f"v_fma_f32 v{S[j]}, v{S[j]}, s60, -v146")
    for j in range(8):
        e(f"v_exp_f32 v{S[j]}, v{S[j]}")
    e("v_mul_f32 v141, v141, v145")
    for j in range(8):
        e(f"v_add_f32 v141, v141, v{S[j]}")
    for j in range(4):
        e(f"v_cvt_pk_bf16_f32 v{136+j}, v{S[2*j]}, v{S[2*j+1]}")
    for i in range(32):
        e(f"v_mul_f32 v{96+i}, v{96+i}, v145")
    e("s_nop 1")
    for db in range(8):
        e(f"v_mfma_f32_16x16x32_bf16 v[{96+4*db}:{99+4*db}], v[{vf+4*db}:{vf+4*db+3}], v[136:139], v[{96+4*db}:{99+4*db}]")
    e("s_nop 7")
    e("s_nop 1")
c_load(0)
c_load(1)
lds_wait_ge(14, F_QRDY-LB, 1, 144, 33, sleep=1)
stamp(2)
for i in range(16):
    e(f"v_mov_b32 v{16+i}, 0")
e("v_lshlrev_b32 v12, 8, v2")
e("v_lshl_add_u32 v12, v3, 4, v12")
e(f"v_add_u32 v12, {L_Q}, v12")
e("v_cmp_gt_u32 vcc, 4, v2")
e("s_and_saveexec_b64 s[64:65], vcc")
for s in range(4):
    e(f"ds_read_b128 v[{16+4*s}:{19+4*s}], v12 offset:{s*64}")
e("s_mov_b64 exec, s[64:65]")
e("s_waitcnt lgkmcnt(0)")
c_compute(0)
e("s_branch C_mid")
lab("C_loop")
c_load(0)
c_compute(0)
c_load(1)
lab("C_mid")
c_compute(1)
e("s_branch C_loop")
lab("C_done")
stamp(3)
cross_rows("add", [141], [145])
e(f"s_mul_i32 s33, s28, 2304")
e(f"s_add_u32 s33, s33, {L_CMB}")
e("v_lshlrev_b32 v144, 9, v2")
e("v_lshl_add_u32 v144, v3, 4, v144")
e("v_add_u32 v144, s33, v144")
e("v_lshlrev_b32 v145, 3, v2")
e("v_add_u32 v145, s33, v145")
e("v_cmp_gt_u32 vcc, 4, v2")
e("s_and_saveexec_b64 s[64:65], vcc")
for db in range(8):
    e(f"ds_write_b128 v144, v[{96+4*db}:{99+4*db}] offset:{db*64}")
e("ds_write_b64 v145, v[140:141] offset:2048")
e("s_mov_b64 exec, s[64:65]")
e("s_waitcnt lgkmcnt(0)")
e("s_barrier")
e("s_lshl_b32 s33, s28, 9")
e(f"s_add_u32 s33, s33, {L_CMB}")
e("v_lshlrev_b32 v144, 3, v1")
e("v_add_u32 v146, s33, v144")
e("s_lshl_b32 s33, s28, 3")
e(f"s_add_u32 s33, s33, {L_CMB + 2048}")
e("v_mov_b32 v145, s33")
for w in range(4):
    e(f"ds_read_b64 v[{32+2*w}:{33+2*w}], v146 offset:{w*2304}")
    e(f"ds_read_b64 v[{40+2*w}:{41+2*w}], v145 offset:{w*2304}")
e("s_waitcnt lgkmcnt(0)")
e("v_max3_f32 v48, v40, v42, v44")
e("v_max_f32 v48, v48, v46")
for w in range(4):
    e(f"v_sub_f32 v{50+w}, v{40+2*w}, v48")
    e(f"v_mul_f32 v{50+w}, s60, v{50+w}")
    e(f"v_exp_f32 v{50+w}, v{50+w}")
e("s_nop 0")
e("v_mul_f32 v49, v41, v50")
e("v_mul_f32 v54, v32, v50")
e("v_mul_f32 v55, v33, v50")
for w in range(1, 4):
    e(f"v_fmac_f32 v49, v{41+2*w}, v{50+w}")
    e(f"v_fmac_f32 v54, v{32+2*w}, v{50+w}")
    e(f"v_fmac_f32 v55, v{33+2*w}, v{50+w}")
e("s_lshl_b32 s33, s28, 9")
e("s_add_u32 s33, s33, s34")
e(f"buffer_store_dwordx2 v[54:55], v144, s[36:39], s33 offen offset:{R_O} sc1")
e("s_lshl_b32 s33, s28, 3")
e("s_add_u32 s33, s33, s34")
e("v_cmp_eq_u32 vcc, 0, v1")
e("s_and_saveexec_b64 s[64:65], vcc")
e(f"buffer_store_dwordx2 v[48:49], v144, s[36:39], s33 offen offset:{R_ML} sc1")
e("s_mov_b64 exec, s[64:65]")
stamp(4)
e("s_and_b32 s62, s2, 3")
e("s_lshr_b32 s63, s28, 1")
e("s_lshl_b32 s63, s63, 3")
e("s_bfe_u32 s33, s2, 0x30002")
e("s_add_u32 s63, s63, s33")
e(f"s_lshl_b32 s63, s63, {RSH+GSH}")
e("s_lshl_b32 s69, s62, 9")
e("s_add_u32 s69, s69, s63")
e("s_lshl_b32 s70, s62, 3")
e("s_add_u32 s70, s70, s63")
e("v_and_b32 v4, 127, v0")
e("v_lshlrev_b32 v4, 2, v4")
e(f"v_lshlrev_b32 v5, {RSH+MSH}, v2")
for sp in range(1, 16):
    e(f"v_add_u32 v{200+sp}, {sp << (RSH+MSH)}, v4")
def t1_issue():
    e(f"buffer_load_dwordx2 v[6:7], v5, s[36:39], s70 offen offset:{R_ML} sc1")
    for sp in range(16):
        e(f"buffer_load_dword v{8+sp}, v{4 if sp == 0 else 200+sp}, s[36:39], s69 offen offset:{R_O} sc1")
poll_loads(t1_issue, [6, 7] + list(range(8, 24)), 28, 66)
stamp(5)
e("v_mov_b32 v28, v6")
dpp_steps("max", [28], ROWCTR)
e("v_sub_f32 v29, v6, v28")
e("v_mul_f32 v29, s60, v29")
e("v_exp_f32 v29, v29")
e("s_nop 0")
e("v_mul_f32 v30, v29, v7")
dpp_steps("add", [30], ROWCTR)
e("v_rcp_f32 v31, v30")
e("s_nop 1")
for sp in range(16):
    e(f"v_readlane_b32 s{66+sp}, v29, {sp}")
e("s_nop 1")
e("v_mul_f32 v27, s66, v8")
for sp in range(1, 16):
    e(f"v_fmac_f32 v27, s{66+sp}, v{8+sp}")
e("v_mul_f32 v8, v27, v31")
e("v_fma_f32 v9, -v8, v30, v27")
e("v_fmac_f32 v8, v9, v31")
e("v_cvt_pk_bf16_f32 v8, v8, v8")
e("v_and_b32 v8, 0xffff, v8")
e("v_lshlrev_b32 v9, 2, v0")
e(f"v_add_u32 v9, {L_OL}, v9")
e("ds_write_b32 v9, v8")
e("s_waitcnt lgkmcnt(0)")
e("s_barrier")
e("s_barrier")
e("s_and_b32 s33, s2, 31")
e("s_cmp_lg_u32 s33, 28")
e("s_cbranch_scc1 DONE")
e("s_cmp_ge_u32 s28, 2")
e("s_cbranch_scc1 DONE")
e("v_lshlrev_b32 v4, 2, v0")
e(f"s_lshl_b32 s33, s35, {RSH+5}")
for hh in range(1, 32):
    e(f"v_add_u32 v{200+hh}, {hh << RSH}, v4")
e("s_lshl_b32 s62, s35, 7")
e("v_lshlrev_b32 v5, 1, v1")
e("s_lshl_b32 s63, s28, 10")
e("s_add_u32 s62, s62, s63")
e("buffer_load_ushort v6, v5, s[44:47], s62 offen")
e(f"v_add_u32 v7, {L_G}, v4")
e("ds_read_b32 v100, v7")
def t2_issue():
    for hh in range(32):
        e(f"buffer_load_dword v{64+hh}, v{4 if hh == 0 else 200+hh}, s[36:39], s33 offen offset:{R_S} sc1")
poll_loads(t2_issue, list(range(64, 96)), 28, 66)
for st in (16, 8, 4, 2, 1):
    for k in range(st):
        e(f"v_add_f32 v{64+k}, v{64+k}, v{64+k+st}")
e("s_waitcnt lgkmcnt(0)")
e("v_cvt_pk_bf16_f32 v64, v64, v64")
e("v_lshlrev_b32 v64, 16, v64")
e("v_mul_f32 v67, v64, v100")
e("v_cvt_pk_bf16_f32 v67, v67, v67")
e("v_lshlrev_b32 v67, 16, v67")
e("v_lshlrev_b32 v6, 16, v6")
e("v_add_f32 v67, v6, v67")
e("v_cvt_pk_bf16_f32 v67, v67, v67")
srd(48, 22, 23, 2048)
e("buffer_store_short v67, v5, s[48:51], s62 offen")
stamp(6)
e("s_branch DONE")

lab("ROLE_HI")
srd(48, 12, 13, 4096*512*2)
e("v_subrev_u32 v4, 256, v0")
e("v_lshrrev_b32 v5, 3, v4")
e("v_and_b32 v6, 7, v4")
e("v_lshlrev_b32 v7, 12, v5")
e("v_lshl_add_u32 v7, v6, 4, v7")
e("s_and_b32 s62, s2, 31")
e("s_lshl_b32 s62, s62, 17")
e("s_lshl_b32 s63, s35, 7")
e("s_add_u32 s62, s62, s63")
e(f"v_mov_b32 v24, {LB}")
e("s_cmp_lg_u32 s28, 4")
e("s_cbranch_scc1 ROLE_H")
def wo_loads():
    for i in range(4):
        if ABL >= 1:
            e(f"buffer_load_dwordx4 v[{32+4*i}:{35+4*i}], v7, s[44:47], 0 offen offset:4000")
            continue
        e(f"buffer_load_dwordx4 v[{32+4*i}:{35+4*i}], v7, s[48:51], s62 offen offset:{i*1024} nt")
if PRIO: e("s_setprio 3")
e("s_lshl_b32 s64, s29, 23")
e("s_lshl_b32 s75, s30, 19")
e("s_add_u32 s52, s6, s64"); e("s_addc_u32 s53, s7, 0"); e("s_mov_b32 s54, 0x800000"); e("s_mov_b32 s55, 0x00020000")
e("s_add_u32 s56, s8, s64"); e("s_addc_u32 s57, s9, 0"); e("s_mov_b32 s58, 0x800000"); e("s_mov_b32 s59, 0x00020000")
if os.environ.get("ONLY") == "K": e("s_mov_b32 s58, 0")
if os.environ.get("ONLY") == "V": e("s_mov_b32 s54, 0")
e("v_lshlrev_b32 v8, 1, v3")
e("v_xor_b32 v8, v2, v8")
e("v_lshlrev_b32 v8, 4, v8")
e("v_lshl_add_u32 v8, v3, 8, v8")
e("v_xor_b32 v9, 0x80, v8")
e(f"s_mul_i32 s66, s2, {ROTM}")
e("s_and_b32 s66, s66, 63")
e("s_lshl_b32 s76, s66, 13")
e("s_add_u32 s66, s76, s75")
e("s_mov_b32 s67, 0")
def dma(srdb):
    for half in range(2):
        if half:
            e("s_add_u32 m0, s67, 4096")
            e("s_add_u32 s68, s66, 4096")
        else:
            e("s_mov_b32 m0, s67")
            e("s_nop 0")
        so = 68 if half else 66
        for n in range(4):
            e(f"buffer_load_dwordx4 v{9 if (n & 1) else 8}, s[{srdb}:{srdb+3}], s{so} offen offset:{n*1024} {POL if srdb == 52 else POLV} lds")
    e("s_add_u32 s67, s67, 8192")
    e("s_and_b32 s67, s67, 0x1ffff")
def adv():
    e("s_add_u32 s76, s76, 8192")
    e("s_and_b32 s76, s76, 0x7ffff")
    e("s_add_u32 s66, s76, s75")
assert D % 2 == 0
for n in range(D0):
    dma(52 if n % 2 == 0 else 56)
    if n % 2: adv()
e("v_lshlrev_b32 v15, 2, v1")
e(f"v_add_u32 v15, {LB}, v15")
e("v_mov_b32 v16, 0")
e("ds_write_b32 v15, v16")
e("s_waitcnt lgkmcnt(0)")
e("s_barrier")
e(f"s_mov_b32 s69, {D0 - D}")
e(f"s_mov_b32 s70, {D0//2}")
lab("L_loop")
for kv in range(2):
    e(f"s_waitcnt vmcnt({(D-1)*8})")
    e("s_add_u32 s69, s69, 1")
    e("v_mov_b32 v16, s69")
    e(f"ds_write_b32 v24, v16 offset:{F_LANDED-LB}")
    if kv == 0 and not PURE:
        sk = uid("LF")
        e("s_cmp_lt_u32 s70, 8")
        e(f"s_cbranch_scc1 {sk}")
        e("s_and_b32 s71, s70, 3")
        e("s_lshl_b32 s71, s71, 2")
        e(f"s_add_u32 s71, s71, {F_CONS}")
        e("v_mov_b32 v17, s71")
        e("s_lshr_b32 s72, s70, 2")
        e("s_sub_u32 s72, s72, 1")
        lds_wait_ge(17, 0, "s72", 18, 73, sleep=1)
        lab(sk)
    dma(52 if kv == 0 else 56)
adv()
e("s_add_u32 s70, s70, 1")
if STAMP:
    for si, cnt in ((1, 8), (2, 16), (4, 32), (5, 64), (6, 96)):
        sk = uid("LS")
        e(f"s_cmp_lg_u32 s69, {cnt}")
        e(f"s_cbranch_scc1 {sk}")
        stamp(si)
        lab(sk)
e(f"s_cmp_lt_u32 s70, {64 if PURE else SST}")
e("s_cbranch_scc1 L_loop")
if not PURE:
    e(f"s_sub_u32 s77, s70, {SST - 1}")
    lds_wait_ge(24, F_TQN-LB, "s77", 18, 73, sleep=1)
    e("s_lshl_b32 s71, s77, 2")
    e(f"s_add_u32 s71, s71, {L_TQ - 4}")
    e("v_mov_b32 v17, s71")
    e("ds_read_b32 v18, v17")
    e("v_mov_b32 v16, s77")
    e(f"ds_write_b32 v24, v16 offset:{F_LIDX-LB}")
    e("s_waitcnt lgkmcnt(0)")
    e("v_readfirstlane_b32 s71, v18")
    e("s_nop 0")
    e(f"s_cmp_ge_u32 s71, {POOL}")
    e("s_cbranch_scc1 L_done")
    e("s_and_b32 s72, s71, 15")
    e("s_lshr_b32 s71, s71, 4")
    e(f"s_lshl_b32 s73, s29, {GSH}")
    e(f"s_lshl_b32 s74, s72, {MSH}")
    e("s_add_u32 s73, s73, s74")
    e(f"s_mul_i32 s73, s73, {ROTM}")
    e("s_add_u32 s73, s73, s71")
    e(f"s_add_u32 s73, s73, {SST}")
    e("s_and_b32 s73, s73, 63")
    e("s_lshl_b32 s73, s73, 13")
    e("s_lshl_b32 s72, s72, 19")
    e("s_add_u32 s66, s72, s73")
    e("s_branch L_loop")
    lab("L_done")
    e("s_lshl_b32 s71, s70, 1")
    e("v_mov_b32 v16, s71")
    e(f"ds_write_b32 v24, v16 offset:{F_TOTAL-LB}")
wo_loads()
for j in range(D):
    e(f"s_waitcnt vmcnt({(D-1-j)*8 + 4})")
    e("s_add_u32 s69, s69, 1")
    e("v_mov_b32 v16, s69")
    e(f"ds_write_b32 v24, v16 offset:{F_LANDED-LB}")
e("s_waitcnt lgkmcnt(0)")
stamp(3)
e("s_branch DONE" if PURE else "s_branch HI_TAIL")

lab("ROLE_H")
if PURE: e("s_branch DONE")
e("s_cmp_lg_u32 s28, 5")
e("s_cbranch_scc1 ROLE_H67")
e("v_lshlrev_b32 v10, 4, v1")
e("s_lshl_b32 s71, s2, 10")
e(f"s_add_u32 s71, s71, {WS_QI}")
e("v_mov_b32 v16, -1"); e("v_mov_b32 v17, -1"); e("v_mov_b32 v18, -1"); e("v_mov_b32 v19, -1")
e("buffer_store_dwordx4 v[16:19], v10, s[36:39], s71 offen sc1")
e("s_barrier")
e("v_and_b32 v13, 3, v1")
e("v_lshlrev_b32 v13, 4, v13")
e("v_lshrrev_b32 v11, 2, v1")
e(f"v_lshlrev_b32 v11, {10+MSH}, v11")
e("v_add_u32 v11, v11, v13")
e(f"s_lshl_b32 s72, s29, {10+GSH}")
e("s_lshl_b32 s73, s30, 6")
e("s_add_u32 s72, s72, s73")
e(f"s_add_u32 s72, s72, {WS_QI}")
e("v_mov_b32 v15, 1")
lds_wait_ge(24, F_QCNT-LB, 4, 16, 33, sleep=0)
e("v_lshlrev_b32 v12, 3, v2")
e(f"v_add_u32 v12, {L_QP}, v12")
for w in range(4):
    e(f"ds_read_b64 v[{16+2*w}:{17+2*w}], v12 offset:{w*128}")
e("s_waitcnt lgkmcnt(0)")
e("v_add_f32 v16, v16, v18"); e("v_add_f32 v17, v17, v19")
e("v_add_f32 v20, v20, v22"); e("v_add_f32 v21, v21, v23")
e("v_add_f32 v16, v16, v20"); e("v_add_f32 v17, v17, v21")
e("v_cvt_pk_bf16_f32 v16, v16, v17")
e("v_lshlrev_b32 v12, 2, v2")
e(f"v_add_u32 v12, {L_Q}, v12")
e("ds_write_b32 v12, v16")
e(f"v_add_u32 v12, {L_Q}, v13")
e("s_waitcnt lgkmcnt(0)")
e("ds_read_b128 v[20:23], v12")
e("s_waitcnt vmcnt(0) lgkmcnt(0)")
e("buffer_store_dwordx4 v[20:23], v11, s[36:39], s72 offen sc1")
stamp(4)
poll_loads(lambda: e("buffer_load_dwordx4 v[16:19], v10, s[36:39], s71 offen sc1"), [16,17,18,19], 26, 66)
e(f"v_add_u32 v13, {L_Q}, v10")
e("ds_write_b128 v13, v[16:19]")
e("s_waitcnt lgkmcnt(0)")
e(f"ds_write_b32 v24, v15 offset:{F_QRDY-LB}")
e("buffer_store_dwordx4 v[20:23], v11, s[36:39], s72 offen sc1")
e("s_waitcnt lgkmcnt(0)")
srd(40, 24, 25, 256)
e("v_mov_b32 v8, -1"); e("v_mov_b32 v9, -1"); e("v_mov_b32 v10, -1"); e("v_mov_b32 v11, -1")
e("v_lshlrev_b32 v12, 4, v1")
e("s_add_u32 s33, s34, 4096")
for i in range(4):
    e(f"buffer_store_dwordx4 v[8:11], v12, s[36:39], s34 offen offset:{i*1024} sc1")
e("buffer_store_dwordx4 v[8:11], v12, s[36:39], s33 offen sc1")
e("s_lshl_b32 s78, s29, 8")
e(f"s_add_u32 s78, s78, {WS_TK}")
e("v_mov_b32 v27, 0")
e("s_cmp_lg_u32 s30, 0")
e("s_cbranch_scc1 H5_notlead")
e("buffer_store_dword v27, v27, s[36:39], s78 offen sc1")
lab("H5_notlead")
e("s_and_b32 s83, s29, 3")
e("s_lshl_b32 s83, s83, 6")
e("s_and_b32 s33, s29, 12")
e("s_add_u32 s83, s83, s33")
e("v_mov_b32 v13, s83")
e("v_mov_b32 v14, 1")
e("s_waitcnt vmcnt(0)")
e("v_cmp_eq_u32 vcc, 0, v1")
e("s_and_saveexec_b64 s[64:65], vcc")
e("buffer_atomic_add v14, v13, s[40:43], 0 offen")
e("s_mov_b64 exec, s[64:65]")
wo_loads()
stamp(1)
lds_wait_ge(24, F_LANDED-LB, 32, 25, 33, sleep=8)
wait_all_counters(25, 26, 66)
e("v_mov_b32 v25, 1")
e(f"ds_write_b32 v24, v25 offset:{F_ALLC-LB}")
e("s_waitcnt lgkmcnt(0)")
stamp(2)
lds_wait_ge(24, F_LANDED-LB, 2*(SST-8), 25, 33, sleep=8)
AH = int(os.environ.get("AH", "2"))
e("s_mov_b32 s79, 0")
e("s_mov_b32 s80, 0")
e("s_mov_b32 s77, 0")
e("s_mov_b64 s[64:65], exec")
e("s_mov_b64 exec, 1")
lab("A_loop")
e(f"ds_read_b32 v25, v24 offset:{F_LIDX-LB}")
e("s_waitcnt lgkmcnt(0)")
e("v_readfirstlane_b32 s81, v25")
e("s_nop 0")
e(f"s_add_u32 s33, s81, {AH}")
e("s_min_u32 s33, s33, 46")
e("s_cmp_ge_u32 s79, s33")
e("s_cbranch_scc1 A_pub")
e("s_and_b32 s33, s79, 3")
e("s_lshl_b64 exec, 1, s33")
e("v_mov_b32 v29, 1")
e("buffer_atomic_add v29, v27, s[36:39], s78 offen sc0")
e("s_mov_b64 exec, 1")
e("s_add_u32 s79, s79, 1")
e("s_branch A_loop")
lab("A_pub")
e("s_cmp_ge_u32 s80, s79")
e("s_cbranch_scc1 A_idle")
e("s_sub_u32 s33, s79, s80")
e("s_cmp_ge_u32 s33, 3")
e("s_cbranch_scc1 A_w2")
e("s_cmp_ge_u32 s33, 2")
e("s_cbranch_scc1 A_w1")
e("s_waitcnt vmcnt(0)")
lab("A_w1")
e("s_waitcnt vmcnt(1)")
lab("A_w2")
e("s_waitcnt vmcnt(2)")
e("s_and_b32 s33, s80, 3")
e("v_readlane_b32 s76, v29, s33")
e("s_lshl_b32 s33, s80, 2")
e(f"s_add_u32 s33, s33, {L_TQ}")
e("v_mov_b32 v30, s33")
e("v_mov_b32 v31, s76")
e("ds_write_b32 v30, v31")
e("s_add_u32 s80, s80, 1")
e("v_mov_b32 v31, s80")
e("s_waitcnt lgkmcnt(0)")
e(f"ds_write_b32 v24, v31 offset:{F_TQN-LB}")
e(f"s_cmp_ge_u32 s76, {POOL}")
e("s_cbranch_scc1 A_done")
e("s_branch A_loop")
lab("A_idle")
e("s_cmp_ge_u32 s80, 46")
e("s_cbranch_scc1 A_full")
e("s_sleep 1")
e("s_add_u32 s77, s77, 1")
e("s_cmp_lt_u32 s77, 0x800000")
e("s_cbranch_scc1 A_loop")
lab("A_full")
e("s_lshl_b32 s33, s80, 2")
e(f"s_add_u32 s33, s33, {L_TQ}")
e("v_mov_b32 v30, s33")
e("v_mov_b32 v31, -1")
e("ds_write_b32 v30, v31")
e("s_add_u32 s80, s80, 1")
e("v_mov_b32 v31, s80")
e("s_waitcnt lgkmcnt(0)")
e(f"ds_write_b32 v24, v31 offset:{F_TQN-LB}")
lab("A_done")
e("s_waitcnt lgkmcnt(0)")
e("s_mov_b64 exec, s[64:65]")
stamp(3)
e("s_branch HI_TAIL")

lab("ROLE_H67")
e("s_barrier")
if ABL >= 1: e("s_branch HI_TAIL")
lds_wait_ge(24, F_QRDY-LB, 1, 25, 33, sleep=4)
wo_loads()
e("v_lshrrev_b32 v8, 3, v1")
e("v_and_b32 v9, 7, v1")
e("s_sub_u32 s74, s28, 6")
e("s_cmp_ge_u32 s2, 224")
e("s_cbranch_scc1 H67_noffn1")
e("s_cmp_eq_u32 s28, 6")
e("s_cselect_b32 s52, s16, s18")
e("s_cselect_b32 s53, s17, s19")
e(f"s_mov_b32 s54, {512*1792*2}")
e("s_mov_b32 s55, 0x00020000")
e("v_lshlrev_b32 v12, 4, v1")
e("buffer_load_dwordx4 v[16:19], v12, s[44:47], 0 offen")
e("buffer_load_dwordx4 v[20:23], v12, s[44:47], 0 offen offset:1024")
e("v_mul_u32_u24 v10, 28672, v8")
e("v_lshl_add_u32 v10, v9, 4, v10")
e("s_lshr_b32 s64, s2, 3")
e("s_lshl_b32 s64, s64, 7")
e("s_and_b32 s81, s2, 7")
e("s_mul_i32 s65, s81, 229376")
e("s_add_u32 s66, s64, s65")
for i in range(8):
    if i: e("s_add_u32 s66, s66, 3584")
    e(f"buffer_load_dwordx4 v[{64+4*i}:{67+4*i}], v10, s[52:55], s66 offen nt")
e("s_waitcnt vmcnt(8)")
layernorm(2, 16, 128, 144)
e("s_lshl_b32 s64, s81, 3")
e("v_add_u32 v12, s64, v8")
e("v_lshlrev_b32 v12, 2, v12")
for i in range(16):
    e(f"ds_bpermute_b32 v{160+i}, v12, v{128+i}")
    if i == 7: e("s_waitcnt lgkmcnt(4)")
for i in range(16):
    e(f"v_mov_b32 v{96+i}, 0")
e("s_waitcnt lgkmcnt(0)")
for i in range(16):
    e(f"v_lshlrev_b32 v{176+i}, 16, v{160+i}")
e("s_waitcnt vmcnt(0)")
for i in range(8):
    for j in range(4):
        w = 64 + 4*i + j
        for b in range(2):
            a = 96 + 8*b + 2*j
            e(f"v_dot2_f32_bf16 v{a}, v{w}, v{160+8*b+i}, v{a}")
            e(f"v_dot2_f32_bf16 v{a+1}, v{w}, v{176+8*b+i}, v{a+1}")
red16(96)
red16_addr(11, 12, 9)
lds_wait_ge(24, F_ALLC-LB, 1, 25, 33, sleep=8)
e("s_lshl_b32 s66, s74, 9")
e("s_add_u32 s66, s66, s34")
e(f"s_add_u32 s66, s66, {R_P}")
e("v_and_b32 v12, 8, v1")
e("v_cmp_eq_u32 vcc, 0, v12")
e("s_and_saveexec_b64 s[64:65], vcc")
e("buffer_store_dwordx4 v[96:99], v11, s[36:39], s66 offen sc1")
e("s_mov_b64 exec, s[64:65]")
stamp(1)
lab("H67_noffn1")
e("s_and_b32 s64, s2, 31")
e("s_cmp_ge_u32 s64, 28")
e("s_cbranch_scc1 H6_fred")
srd(52, 20, 21, 1792*512*2)
e("v_lshlrev_b32 v10, 12, v8")
e("v_lshl_add_u32 v10, v9, 4, v10")
e("s_lshl_b32 s66, s64, 16")
e("s_lshl_b32 s67, s74, 15")
e("s_add_u32 s66, s66, s67")
e("s_add_u32 s66, s66, s63")
for i in range(4):
    e(f"buffer_load_dwordx4 v[{48+4*i}:{51+4*i}], v10, s[52:55], s66 offen offset:{i*1024} nt")
lds_wait_ge(24, F_ALLC-LB, 1, 25, 33, sleep=8)
lds_wait_ge(24, F_LANDED-LB, PGATE, 25, 33, sleep=8)
e("v_lshlrev_b32 v11, 4, v8")
e(f"s_lshl_b32 s66, s64, {RSH+3}")
e("s_lshl_b32 s67, s74, 7")
e("s_add_u32 s66, s66, s67")
e(f"s_add_u32 s66, s66, {R_P}")
for rb in range(1, 8):
    e(f"v_add_u32 v{200+rb}, {rb << RSH}, v11")
def p_issue():
    for rb in range(8):
        for mb in range(4):
            r = 64 + (rb*4+mb)*4
            e(f"buffer_load_dwordx4 v[{r}:{r+3}], v{11 if rb == 0 else 200+rb}, s[36:39], s66 offen offset:{mb*256} sc1")
poll_loads(p_issue, list(range(64, 192)), 28, 68, sleep=48)
for rb in range(1, 8):
    for k in range(16):
        e(f"v_add_f32 v{64+k}, v{64+k}, v{64+rb*16+k}")
for k in range(8):
    round_pair(64+k, 72+k, 96)
    silu(97, 64+k, 98, 99)
    e("v_cvt_pk_bf16_f32 v96, v97, v97")
    e("v_lshlrev_b32 v97, 16, v96")
    e(f"v_mul_f32 v97, v97, v{72+k}")
    e("v_cvt_pk_bf16_f32 v96, v97, v97")
    e(f"v_and_b32 v{80+2*k}, 0xffff, v96")
    e(f"v_lshlrev_b32 v{81+2*k}, 16, v96")
for i in range(16):
    e(f"v_mov_b32 v{96+i}, 0")
for i in range(4):
    for j in range(4):
        w = 48 + 4*i + j
        for b in range(2):
            a = 96 + 8*b + 2*j
            e(f"v_dot2_f32_bf16 v{a}, v{w}, v{80+b*8+2*i}, v{a}")
            e(f"v_dot2_f32_bf16 v{a+1}, v{w}, v{81+b*8+2*i}, v{a+1}")
red16(96)
red16_addr(11, 12, 9)
e("s_lshl_b32 s66, s74, 9")
e("s_add_u32 s66, s66, s34")
e("v_and_b32 v12, 8, v1")
e("v_cmp_eq_u32 vcc, 0, v12")
e("s_and_saveexec_b64 s[64:65], vcc")
e(f"buffer_store_dwordx4 v[96:99], v11, s[36:39], s66 offen offset:{R_F} sc1")
e("s_mov_b64 exec, s[64:65]")
stamp(3)
e("s_branch HI_TAIL")
lab("H6_fred")
e("s_cmp_lg_u32 s64, 28")
e("s_cbranch_scc1 HI_TAIL")
e("s_cmp_lg_u32 s28, 6")
e("s_cbranch_scc1 HI_TAIL")
lds_wait_ge(24, F_ALLC-LB, 1, 25, 33, sleep=8)
lds_wait_ge(24, F_LANDED-LB, FGATE, 25, 33, sleep=8)
e("v_lshlrev_b32 v13, 3, v1")
e(f"s_lshl_b32 s33, s35, {RSH+5}")
for hh in range(1, 28):
    e(f"v_add_u32 v{200+hh}, {hh << RSH}, v13")
def fr_issue():
    for hh in range(28):
        for pt in range(2):
            r = 64 + (hh*2+pt)*2
            e(f"buffer_load_dwordx2 v[{r}:{r+1}], v{13 if hh == 0 else 200+hh}, s[36:39], s33 offen offset:{R_F + pt*512} sc1")
poll_loads(fr_issue, list(range(64, 176)), 28, 66, sleep=64)
for k in range(1, 56):
    e(f"v_add_f32 v64, v64, v{64+2*k}")
    e(f"v_add_f32 v65, v65, v{65+2*k}")
round_pair(64, 65, 66)
silu(68, 64, 70, 71)
silu(69, 65, 70, 71)
round_pair(68, 69, 66)
e(f"v_add_u32 v13, {L_G}, v13")
e("ds_write_b64 v13, v[68:69]")
e("s_waitcnt lgkmcnt(0)")
stamp(3)
e("s_branch HI_TAIL")


lab("HI_TAIL")
e("s_waitcnt vmcnt(0)")
e("v_lshlrev_b32 v8, 4, v5")
e(f"v_add_u32 v8, {L_OL}, v8")
for i in range(16):
    e(f"v_mov_b32 v{96+i}, 0")
red16_addr(11, 12, 6)
e("s_sub_u32 s33, s28, 4")
e("s_lshl_b32 s33, s33, 9")
e(f"s_add_u32 s33, s33, {L_RED}")
e("v_add_u32 v11, s33, v11")
e("s_barrier")
e("s_barrier")
e("ds_read_b128 v[16:19], v8")
e("ds_read_b128 v[20:23], v8 offset:512")
e("s_waitcnt lgkmcnt(0)")
for i in range(8):
    e(f"v_lshlrev_b32 v{24+i}, 16, v{16+i}")
for i in range(4):
    for j in range(4):
        w = 32 + 4*i + j
        for b in range(2):
            a = 96 + 8*b + 2*j
            e(f"v_dot2_f32_bf16 v{a}, v{w}, v{16+b*4+i}, v{a}")
            e(f"v_dot2_f32_bf16 v{a+1}, v{w}, v{24+b*4+i}, v{a+1}")
red16(96)
e("v_and_b32 v12, 8, v1")
e("v_cmp_eq_u32 vcc, 0, v12")
e("s_and_saveexec_b64 s[64:65], vcc")
e("ds_write_b128 v11, v[96:99]")
e("s_mov_b64 exec, s[64:65]")
e("s_waitcnt lgkmcnt(0)")
e("s_barrier")
e("s_cmp_ge_u32 s28, 6")
e("s_cbranch_scc1 DONE")
e("v_lshlrev_b32 v12, 2, v4")
e(f"v_add_u32 v13, {L_RED}, v12")
for w in range(4):
    e(f"ds_read_b32 v{16+w}, v13 offset:{w*512}")
e("s_waitcnt lgkmcnt(0)")
e("v_add_f32 v16, v16, v17")
e("v_add_f32 v18, v18, v19")
e("v_add_f32 v16, v16, v18")
e(f"buffer_store_dword v16, v12, s[36:39], s34 offen offset:{R_S} sc1")
lab("DONE")
if STAMP:
    e("s_mov_b64 exec, -1")
    e("s_cmp_ge_u32 s2, 256")
    e("s_cbranch_scc1 DONE2")
    stamp(7)
    e("s_waitcnt lgkmcnt(0) vmcnt(0)")
    for i in range(8):
        e(f"v_mov_b32 v{8+i}, s{84+2*i}")
    e("s_lshl_b32 s33, s2, 8")
    e("s_lshl_b32 s34, s28, 5")
    e("s_add_u32 s33, s33, s34")
    e(f"s_add_u32 s33, s33, {STAMP_OFF}")
    e("v_mov_b32 v4, s33")
    e("v_and_b32 v5, 63, v0")
    e("v_cmp_eq_u32 vcc, 0, v5")
    e("s_and_saveexec_b64 s[64:65], vcc")
    e("buffer_store_dwordx4 v[8:11], v4, s[36:39], 0 offen")
    e("buffer_store_dwordx4 v[12:15], v4, s[36:39], 0 offen offset:16")
    if STAMP == 2:
        srd(40, 24, 25, 256)
        e("v_mov_b32 v20, 16"); e("buffer_atomic_umax v15, v20, s[40:43], 0 offen")
        e("v_not_b32 v21, v8"); e("v_mov_b32 v20, 20"); e("buffer_atomic_umax v21, v20, s[40:43], 0 offen")
        e("s_cmp_lg_u32 s28, 4"); e("s_cbranch_scc1 DG1")
        e("v_mov_b32 v20, 24"); e("buffer_atomic_umax v11, v20, s[40:43], 0 offen")
        e("v_mov_b32 v20, 32"); e("buffer_atomic_umax v10, v20, s[40:43], 0 offen")
        e("v_not_b32 v21, v11"); e("v_mov_b32 v20, 36"); e("buffer_atomic_umax v21, v20, s[40:43], 0 offen")
        e("v_mov_b32 v20, 40"); e("buffer_atomic_umax v13, v20, s[40:43], 0 offen")
        lab("DG1")
        e("s_cmp_lg_u32 s28, 0"); e("s_cbranch_scc1 DG2")
        e("v_mov_b32 v20, 28"); e("buffer_atomic_umax v10, v20, s[40:43], 0 offen")
        e("v_mov_b32 v20, 44"); e("buffer_atomic_umax v8, v20, s[40:43], 0 offen")
        lab("DG2")
    lab("DONE2")
e("s_endpgm")
raw('.section .rodata,"a"')
raw(".p2align 6")
raw(f".amdhsa_kernel {KNAME}")
raw("  .amdhsa_next_free_vgpr 248")
raw("  .amdhsa_next_free_sgpr 100")
raw("  .amdhsa_accum_offset 248")
raw("  .amdhsa_group_segment_fixed_size 0")
raw("  .amdhsa_kernarg_size 96")
raw("  .amdhsa_user_sgpr_count 2")
raw("  .amdhsa_user_sgpr_kernarg_segment_ptr 1")
raw("  .amdhsa_system_sgpr_workgroup_id_x 1")
raw("  .amdhsa_float_denorm_mode_32 3")
raw(".end_amdhsa_kernel")
hdr = open(f"cdna_kernels/{NAME}.s.ref").read().split("\n")
head = [l for l in hdr if l.startswith(";") and "@launch" not in l]
out = head + [f"; @launch grid=(256,1,1) block=(512,1,1) lds={LDS_TOTAL}",
              '.amdgcn_target "amdgcn-amd-amdhsa--gfx950"', ".text"]
dst = sys.argv[1] if len(sys.argv) > 1 else f"cdna_kernels/{NAME}.s"
open(dst, "w").write("\n".join(out + L) + "\n")
print("wrote", dst, len(L), "lines; LDS", LDS_TOTAL)
```

```python
import sys, os
NAME = "recurrent_scan__gqa_block_cached__glu_gated_swiglu__decode"
STAMP = int(os.environ.get("STAMP", "0"))
PURE = int(os.environ.get("PURE", "0"))
D = int(os.environ.get("D", "4"))
ROTM = int(os.environ.get("ROTM", "1"))
SST = int(os.environ.get("SST", "54"))
POOL = 16 * (64 - SST)
ABL = int(os.environ.get("ABL", "0"))
PRIO = int(os.environ.get("PRIO", "2"))
D0 = int(os.environ.get("D0", "4"))
MAP = int(os.environ.get("MAP", "1"))
GSH, MSH = (4, 0) if MAP else (0, 4)
LA = int(os.environ.get("LA", "2"))
PGATE = int(os.environ.get("PGATE", "56"))
FGATE = int(os.environ.get("FGATE", "80"))
LOG2E = 0x3fb8aa3b
SCALE = 0x3db504f3
EPS   = 0x3727c5ac
SPIN_MAX = 400000
RSH = 13
R_O = 0; R_ML = 2048; R_S = 2560; R_F = 3072; R_P = 4096
WS_QI = 256 << RSH
WS_TK = WS_QI + 256 * 1024
WS_USED = WS_TK + 16 * 256
STAMP_OFF = 0x300000
LB = 131072
F_LANDED = LB + 0; F_CONS = LB + 16; F_QCNT = LB + 32; F_QRDY = LB + 36; F_ALLC = LB + 40; F_CLR = LB + 48; F_TOTAL = LB + 4; F_TQN = LB + 52; F_LIDX = LB + 56
L_TQ = LB + 64
L_XN = LB + 256
L_QP = LB + 2304
L_Q = LB + 3072
L_CMB = LB + 4096
L_OL = L_CMB + 4*2304
L_RED = L_OL + 1024
L_G = L_RED + 2048
LDS_TOTAL = L_G + 512

L = []
def e(s): L.append("    " + s)
def lab(s): L.append(s + ":")
def raw(s): L.append(s)
_uid = [0]
def uid(p):
    _uid[0] += 1
    return f"{p}_{_uid[0]}"
def srd(d, lo, hi, nrec):
    e(f"s_mov_b32 s{d}, s{lo}")
    e(f"s_mov_b32 s{d+1}, s{hi}")
    e(f"s_mov_b32 s{d+2}, {nrec}")
    e(f"s_mov_b32 s{d+3}, 0x00020000")
DPPM = "row_mask:0xf bank_mask:0xf"
def dpp_steps(op, regs, ctrls):
    for ctrl in ctrls:
        e("s_nop 1")
        for v in regs:
            e(f"v_{op}_f32_dpp v{v}, v{v}, v{v} {ctrl} {DPPM}")
ROWCTR = ("quad_perm:[1,0,3,2]", "quad_perm:[2,3,0,1]", "row_ror:4", "row_ror:8")
def cross_rows(op, regs, tmps):
    for sw in ("v_permlane16_swap_b32", "v_permlane32_swap_b32"):
        for v, t in zip(regs, tmps):
            e(f"v_mov_b32 v{t}, v{v}")
        e("s_nop 1")
        for v, t in zip(regs, tmps):
            e(f"{sw} v{v}, v{t}")
        e("s_nop 0")
        for v, t in zip(regs, tmps):
            e(f"v_{op}_f32 v{v}, v{v}, v{t}")
def allreduce(op, regs, tmps):
    dpp_steps(op, regs, ROWCTR)
    cross_rows(op, regs, tmps)
def swap_add(sw, pairs):
    e("s_nop 1")
    for a, b in pairs:
        e(f"{sw} v{a}, v{b}")
    e("s_nop 0")
    for a, b in pairs:
        e(f"v_add_f32 v{a}, v{a}, v{b}")
def unpack(dlo, dhi, src):
    e(f"v_lshlrev_b32 v{dlo}, 16, v{src}")
    e(f"v_and_b32 v{dhi}, 0xffff0000, v{src}")
def round_pair(a, b, t):
    e(f"v_cvt_pk_bf16_f32 v{t}, v{a}, v{b}")
    unpack(a, b, t)
def stamp(i):
    if STAMP:
        e(f"s_memrealtime s[{84+2*i}:{85+2*i}]")

def layernorm(nb, xa, o0, t0):
    f = o0
    B = range(nb)
    for b in B:
        for j in range(4):
            unpack(f + b*8 + 2*j, f + b*8 + 2*j + 1, xa + b*4 + j)
    S = [t0, t0+1][:nb]; U = [t0+2, t0+3][:nb]; Q = [t0+4, t0+5][:nb]; d = t0+6; R = [t0+7, t0+8][:nb]
    for b in B:
        e(f"v_add_f32 v{S[b]}, v{f+b*8}, v{f+b*8+1}")
        for j in range(2, 8):
            e(f"v_add_f32 v{S[b]}, v{S[b]}, v{f+b*8+j}")
    allreduce("add", S, U)
    for b in B: e(f"v_mul_f32 v{S[b]}, 0x3b000000, v{S[b]}")
    for b in B:
        e(f"v_sub_f32 v{d}, v{f+b*8}, v{S[b]}")
        e(f"v_mul_f32 v{Q[b]}, v{d}, v{d}")
        for j in range(1, 8):
            e(f"v_sub_f32 v{d}, v{f+b*8+j}, v{S[b]}")
            e(f"v_fmac_f32 v{Q[b]}, v{d}, v{d}")
    allreduce("add", Q, U)
    for b in B: e(f"v_mul_f32 v{Q[b]}, 0x3b000000, v{Q[b]}")
    for b in B:
        round_pair(S[b], Q[b], d)
        e(f"v_add_f32 v{Q[b]}, {EPS:#x}, v{Q[b]}")
        e(f"v_cvt_pk_bf16_f32 v{d}, v{Q[b]}, v{Q[b]}")
        e(f"v_lshlrev_b32 v{Q[b]}, 16, v{d}")
        e(f"v_sqrt_f32 v{Q[b]}, v{Q[b]}")
        e("s_nop 0")
        e(f"v_cvt_pk_bf16_f32 v{d}, v{Q[b]}, v{Q[b]}")
        e(f"v_lshlrev_b32 v{Q[b]}, 16, v{d}")
        e(f"v_rcp_f32 v{R[b]}, v{Q[b]}")
    e("s_nop 0")
    ta, tb, tc, td = t0+9, t0+10, t0+11, t0+12
    for b in B:
        s, q, r = S[b], Q[b], R[b]
        for j in range(0, 8, 2):
            a0, a1 = f+b*8+j, f+b*8+j+1
            e(f"v_sub_f32 v{a0}, v{a0}, v{s}")
            e(f"v_sub_f32 v{a1}, v{a1}, v{s}")
            round_pair(a0, a1, d)
            e(f"v_mul_f32 v{ta}, v{a0}, v{r}")
            e(f"v_mul_f32 v{tb}, v{a1}, v{r}")
            e(f"v_fma_f32 v{tc}, -v{ta}, v{q}, v{a0}")
            e(f"v_fma_f32 v{td}, -v{tb}, v{q}, v{a1}")
            e(f"v_fmac_f32 v{ta}, v{tc}, v{r}")
            e(f"v_fmac_f32 v{tb}, v{td}, v{r}")
            e(f"v_cvt_pk_bf16_f32 v{d}, v{ta}, v{tb}")
            e(f"v_and_b32 v{a0}, 0xffff, v{d}")
            e(f"v_lshrrev_b32 v{a1}, 16, v{d}")

def silu(dst, src, t1, t2):
    e(f"v_mul_f32 v{t1}, 0xbfb8aa3b, v{src}")
    e(f"v_exp_f32 v{t1}, v{t1}")
    e("s_nop 0")
    e(f"v_add_f32 v{t1}, 1.0, v{t1}")
    e(f"v_rcp_f32 v{t2}, v{t1}")
    e("s_nop 0")
    e(f"v_mul_f32 v{dst}, v{src}, v{t2}")

def lds_wait_ge(vaddr, off, need, vt, st, sleep=1):
    l0, l1 = uid("LW"), uid("LG")
    e("s_mov_b32 s82, 0")
    lab(l0)
    e(f"ds_read_b32 v{vt}, v{vaddr} offset:{off}")
    e("s_waitcnt lgkmcnt(0)")
    e(f"v_readfirstlane_b32 s{st}, v{vt}")
    e("s_add_u32 s82, s82, 1")
    e(f"s_cmp_ge_u32 s{st}, {need}")
    e(f"s_cbranch_scc1 {l1}")
    e(f"s_sleep {sleep}")
    e("s_cmp_lt_u32 s82, 0x800000")
    e(f"s_cbranch_scc1 {l0}")
    lab(l1)

def poll_loads(issue, regs, vt, scnt, sleep=None):
    l0, l1 = uid("PL"), uid("PG")
    e(f"s_mov_b32 s{scnt}, 0")
    lab(l0)
    issue()
    e("s_waitcnt vmcnt(0)")
    rs = list(regs)
    e(f"v_mov_b32 v{vt}, v{rs[0]}")
    i = 1
    while i < len(rs):
        if i + 1 < len(rs):
            e(f"v_max3_u32 v{vt}, v{vt}, v{rs[i]}, v{rs[i+1]}"); i += 2
        else:
            e(f"v_max_u32 v{vt}, v{vt}, v{rs[i]}"); i += 1
    e(f"v_cmp_eq_u32 vcc, -1, v{vt}")
    e(f"s_add_u32 s{scnt}, s{scnt}, 1")
    e("s_cmp_eq_u64 vcc, 0")
    e(f"s_cbranch_scc1 {l1}")
    if sleep is not None: e(f"s_sleep {sleep}")
    e(f"s_cmp_lt_u32 s{scnt}, {SPIN_MAX}")
    e(f"s_cbranch_scc1 {l0}")
    lab(l1)

def wait_all_counters(vt, va, scnt):
    l0, l1 = uid("WC"), uid("WG")
    e(f"v_and_b32 v{va}, 3, v1")
    e(f"v_lshlrev_b32 v{va}, 6, v{va}")
    e(f"v_and_b32 v{vt}, 12, v1")
    e(f"v_add_u32 v{va}, v{va}, v{vt}")
    e(f"s_mov_b32 s{scnt}, 0")
    lab(l0)
    e(f"buffer_load_dword v{vt}, v{va}, s[40:43], 0 offen sc1")
    e("s_waitcnt vmcnt(0)")
    e(f"v_cmp_gt_u32 vcc, 16, v{vt}")
    e(f"s_add_u32 s{scnt}, s{scnt}, 1")
    e("s_cmp_eq_u64 vcc, 0")
    e(f"s_cbranch_scc1 {l1}")
    e("s_sleep 32")
    e(f"s_cmp_lt_u32 s{scnt}, {SPIN_MAX}")
    e(f"s_cbranch_scc1 {l0}")
    lab(l1)

def red16(acc):
    e("s_nop 3")
    swap_add("v_permlane32_swap_b32", [(acc+j, acc+8+j) for j in range(8)])
    swap_add("v_permlane16_swap_b32", [(acc+j, acc+4+j) for j in range(4)])
    dpp_steps("add", [acc+j for j in range(4)], ("row_ror:8",))

def red16_addr(dst, tmp, cq):
    e(f"v_lshrrev_b32 v{dst}, 1, v3")
    e(f"v_lshlrev_b32 v{dst}, 8, v{dst}")
    e(f"v_and_b32 v{tmp}, 1, v3")
    e(f"v_lshl_add_u32 v{dst}, v{tmp}, 4, v{dst}")
    e(f"v_lshl_add_u32 v{dst}, v{cq}, 5, v{dst}")

KNAME = NAME + "_kernel"
raw(f".globl {KNAME}"); raw(".p2align 8"); raw(f".type {KNAME},@function"); lab(KNAME)
stamp(0)
e("s_cmp_ge_u32 s2, 256")
e("s_cbranch_scc1 DONE")
e("s_load_dwordx16 s[4:19], s[0:1], 0")
e("s_load_dwordx8 s[20:27], s[0:1], 64")
e("v_lshrrev_b32 v1, 6, v0")
e("s_nop 0")
e("v_readfirstlane_b32 s28, v1")
e("v_and_b32 v1, 63, v0")
if MAP:
    e("s_lshr_b32 s29, s2, 4")
    e("s_and_b32 s30, s2, 15")
else:
    e("s_and_b32 s29, s2, 15")
    e("s_lshr_b32 s30, s2, 4")
e("s_lshr_b32 s31, s29, 3")
e("s_and_b32 s32, s29, 7")
e(f"s_lshl_b32 s34, s2, {RSH}")
e("s_lshr_b32 s35, s2, 5")
e("v_and_b32 v2, 15, v1")
e("v_lshrrev_b32 v3, 4, v1")
e("s_cmp_ge_u32 s28, 4")
e("s_waitcnt lgkmcnt(0)")
srd(36, 26, 27, WS_USED if not STAMP else 0x400000)
srd(44, 4, 5, 2048)
e(f"s_mov_b32 s60, {LOG2E:#x}")
e(f"s_mov_b32 s61, {SCALE:#x}")
e("s_cbranch_scc1 ROLE_HI")
if PURE == 1: e("s_branch DONE")
if PURE == 3:
    srd(48, 10, 11, 512*4096*2)
    e("v_lshrrev_b32 v5, 3, v0"); e("v_and_b32 v6, 7, v0")
    e("v_lshlrev_b32 v7, 15, v5"); e("v_lshl_add_u32 v7, v6, 4, v7")
    e("s_lshl_b32 s62, s31, 4"); e("s_add_u32 s62, s62, s30")
    e("s_and_b32 s63, s62, 7"); e("s_lshl_b32 s63, s63, 7")
    e("s_lshr_b32 s62, s62, 3"); e("s_lshl_b32 s62, s62, 20")
    e("s_add_u32 s62, s62, s63"); e("s_lshl_b32 s63, s32, 10"); e("s_add_u32 s62, s62, s63")
    for i in range(4):
        if i: e("s_add_u32 s62, s62, 8192")
        e(f"buffer_load_dwordx4 v[{32+4*i}:{35+4*i}], v7, s[48:51], s62 offen nt")
    e("s_waitcnt vmcnt(0)")
    stamp(1)
    e("s_branch DONE")

srd(48, 10, 11, 512*4096*2)
e("v_lshlrev_b32 v4, 4, v1")
e("s_lshl_b32 s33, s31, 10")
e("buffer_load_dwordx4 v[8:11], v4, s[44:47], s33 offen")
e("v_lshrrev_b32 v5, 2, v0")
e("v_and_b32 v6, 3, v0")
e("v_lshlrev_b32 v7, 16, v5")
e("v_lshl_add_u32 v7, v6, 4, v7")
e("s_lshl_b32 s62, s32, 10")
e("s_lshl_b32 s63, s30, 6")
e("s_add_u32 s62, s62, s63")
WQNT = os.environ.get("WQNT", " nt")
for i in range(8):
    if i: e(f"s_add_u32 s62, s62, 8192")
    e(f"buffer_load_dwordx4 v[{32+4*i}:{35+4*i}], v7, s[48:51], s62 offen{WQNT}")
if PURE == 2:
    e("s_waitcnt vmcnt(0)")
    stamp(1)
    e("s_branch DONE")
e("s_barrier")
e(f"v_mov_b32 v14, {LB}")
e("v_mov_b32 v15, 1")
e("s_waitcnt vmcnt(8)")
layernorm(1, 8, 64, 80)
e("v_lshlrev_b32 v12, 5, v1")
e(f"v_add_u32 v12, {L_XN}, v12")
e("ds_write_b128 v12, v[64:67]")
e("ds_write_b128 v12, v[68:71] offset:16")
e("v_lshlrev_b32 v13, 5, v5")
e(f"v_add_u32 v13, {L_XN}, v13")
e("s_waitcnt lgkmcnt(0)")
e("ds_read_b128 v[64:67], v13")
e("ds_read_b128 v[68:71], v13 offset:16")
for i in range(8):
    e(f"v_mov_b32 v{96+i}, 0")
e("s_waitcnt lgkmcnt(0)")
for i in range(8):
    e(f"v_lshlrev_b32 v{72+i}, 16, v{64+i}")
e("s_waitcnt vmcnt(0)")
for i in range(8):
    for j in range(4):
        w = 32 + 4*i + j
        e(f"v_dot2_f32_bf16 v{96+2*j}, v{w}, v{64+i}, v{96+2*j}")
        e(f"v_dot2_f32_bf16 v{97+2*j}, v{w}, v{72+i}, v{97+2*j}")
e("s_nop 3")
swap_add("v_permlane32_swap_b32", [(96+j, 100+j) for j in range(4)])
swap_add("v_permlane16_swap_b32", [(96+j, 98+j) for j in range(2)])
dpp_steps("add", [96, 97], ("row_ror:4", "row_ror:8"))
e("v_lshlrev_b32 v12, 5, v6")
e("v_lshl_add_u32 v12, v3, 3, v12")
e("s_lshl_b32 s33, s28, 7")
e(f"s_add_u32 s33, s33, {L_QP}")
e("v_add_u32 v12, s33, v12")
e("v_and_b32 v13, 12, v1")
e("v_cmp_eq_u32 vcc, 0, v13")
e("s_and_saveexec_b64 s[64:65], vcc")
e("ds_write_b64 v12, v[96:97]")
e("s_mov_b64 exec, s[64:65]")
e("s_waitcnt lgkmcnt(0)")
e("v_cmp_eq_u32 vcc, 0, v1")
e("s_and_saveexec_b64 s[64:65], vcc")
e(f"ds_add_u32 v14, v15 offset:{F_QCNT-LB}")
e("s_mov_b64 exec, s[64:65]")
lab("C_pre")
if PRIO >= 2: e("s_setprio 2")
e("s_lshl_b32 s33, s28, 14")
e("v_and_b32 v145, 7, v2")
e("v_lshlrev_b32 v145, 1, v145")
e("v_xor_b32 v145, v3, v145")
e("v_lshlrev_b32 v145, 4, v145")
e("v_lshl_add_u32 v145, v2, 8, v145")
e("v_add_u32 v160, s33, v145")
for s in range(1, 4):
    e(f"v_xor_b32 v{160+s}, {s*64}, v160")
for s in range(4):
    e(f"v_add_u32 v{164+s}, 0x10000, v{160+s}")
e("v_bfe_u32 v145, v1, 2, 2")
e("v_lshl_add_u32 v145, v3, 2, v145")
e("v_and_b32 v146, 7, v145")
e("v_lshlrev_b32 v146, 1, v146")
e("v_bfe_u32 v147, v1, 1, 1")
e("v_xor_b32 v146, v146, v147")
e("v_lshlrev_b32 v146, 4, v146")
e("v_lshl_add_u32 v146, v145, 8, v146")
e("v_and_b32 v147, 1, v1")
e("v_lshl_add_u32 v146, v147, 3, v146")
e("v_add_u32 v146, 8192, v146")
e("v_add_u32 v168, s33, v146")
for db in range(1, 8):
    e(f"v_xor_b32 v{168+db}, {db*32}, v168")
for db in range(8):
    e(f"v_add_u32 v{176+db}, 0x10000, v{168+db}")
for i in range(32):
    e(f"v_mov_b32 v{96+i}, 0")
e("v_mov_b32 v140, 0xff800000")
e("v_mov_b32 v141, 0")
e("s_lshl_b32 s66, s28, 1")
e("s_add_u32 s66, s66, 1")
e("s_mov_b32 s67, 0")
e("s_lshl_b32 s33, s28, 2")
e(f"s_add_u32 s33, s33, {F_CONS}")
e("v_mov_b32 v150, s33")
e("s_mov_b32 s68, 0")
KF = (32, 184); VF = (64, 216)
def c_load(p):
    kf, vf = KF[p], VF[p]
    sk = uid("CK"); l0 = uid("CW")
    e("s_cmp_ge_u32 s68, s66")
    e(f"s_cbranch_scc1 {sk}")
    e("s_mov_b32 s82, 0")
    lab(l0)
    e(f"ds_read_b64 v[144:145], v14 offset:{F_LANDED-LB}")
    e("s_waitcnt lgkmcnt(0)")
    e("v_readfirstlane_b32 s68, v144")
    e("v_readfirstlane_b32 s33, v145")
    e("s_add_u32 s82, s82, 1")
    e("s_cmp_ge_u32 s68, s66")
    e(f"s_cbranch_scc1 {sk}")
    e("s_sub_u32 s33, s33, 1")
    e("s_cmp_lt_u32 s33, s66")
    e("s_cbranch_scc1 C_done")
    e("s_sleep 1")
    e("s_cmp_lt_u32 s82, 0x800000")
    e(f"s_cbranch_scc1 {l0}")
    lab(sk)
    for t in range(2):
        for s in range(4):
            r = kf + (t*4+s)*4
            e(f"ds_read_b128 v[{r}:{r+3}], v{160+4*p+s} offset:{t*4096}")
    e("s_add_u32 s66, s66, 1")
    sk = uid("CV")
    e("s_cmp_ge_u32 s68, s66")
    e(f"s_cbranch_scc1 {sk}")
    lds_wait_ge(14, F_LANDED-LB, "s66", 144, 68, sleep=1)
    lab(sk)
    e("s_waitcnt lgkmcnt(4)")
    for db in range(8):
        for t in range(2):
            r = vf + db*4 + t*2
            e(f"ds_read_b64_tr_b16 v[{r}:{r+1}], v{168+8*p+db} offset:{t*4096}")
        if db in (2, 5):
            e("s_waitcnt lgkmcnt(4)")
    e("s_add_u32 s67, s67, 1")
    e("v_mov_b32 v151, s67")
    e("s_add_u32 s66, s66, 7")
    e("s_waitcnt lgkmcnt(0)")
    e("ds_write_b32 v150, v151")
def c_compute(p):
    if ABL >= 2: return
    kf, vf = KF[p], VF[p]
    for s in range(4):
        for t in range(2):
            r = kf + (t*4+s)*4
            d = 128 + 4*t
            c = "0" if s == 0 else f"v[{d}:{d+3}]"
            e(f"v_mfma_f32_16x16x32_bf16 v[{d}:{d+3}], v[{r}:{r+3}], v[{16+4*s}:{19+4*s}], {c}")
    e("s_nop 7")
    e("s_nop 1")
    S = list(range(128, 136))
    for j in range(0, 8, 2):
        round_pair(S[j], S[j+1], 152 + j//2)
    for j in range(8):
        e(f"v_mul_f32 v{S[j]}, s61, v{S[j]}")
    for j in range(0, 8, 2):
        round_pair(S[j], S[j+1], 152 + j//2)
    e("v_max3_f32 v144, v128, v129, v130")
    e("v_max3_f32 v145, v131, v132, v133")
    e("v_max3_f32 v144, v144, v134, v135")
    e("v_max_f32 v144, v144, v145")
    cross_rows("max", [144], [145])
    e("v_max_f32 v144, v144, v140")
    e("v_sub_f32 v145, v140, v144")
    e("v_mul_f32 v145, s60, v145")
    e("v_exp_f32 v145, v145")
    e("v_mov_b32 v140, v144")
    e("v_mul_f32 v146, s60, v144")
    for j in range(8):
        e(f"v_fma_f32 v{S[j]}, v{S[j]}, s60, -v146")
    for j in range(8):
        e(f"v_exp_f32 v{S[j]}, v{S[j]}")
    e("v_mul_f32 v141, v141, v145")
    for j in range(8):
        e(f"v_add_f32 v141, v141, v{S[j]}")
    for j in range(4):
        e(f"v_cvt_pk_bf16_f32 v{136+j}, v{S[2*j]}, v{S[2*j+1]}")
    for i in range(32):
        e(f"v_mul_f32 v{96+i}, v{96+i}, v145")
    e("s_nop 1")
    for db in range(8):
        e(f"v_mfma_f32_16x16x32_bf16 v[{96+4*db}:{99+4*db}], v[{vf+4*db}:{vf+4*db+3}], v[136:139], v[{96+4*db}:{99+4*db}]")
    e("s_nop 7")
    e("s_nop 1")
c_load(0)
c_load(1)
lds_wait_ge(14, F_QRDY-LB, 1, 144, 33, sleep=1)
stamp(2)
for i in range(16):
    e(f"v_mov_b32 v{16+i}, 0")
e("v_lshlrev_b32 v12, 8, v2")
e("v_lshl_add_u32 v12, v3, 4, v12")
e(f"v_add_u32 v12, {L_Q}, v12")
e("v_cmp_gt_u32 vcc, 4, v2")
e("s_and_saveexec_b64 s[64:65], vcc")
for s in range(4):
    e(f"ds_read_b128 v[{16+4*s}:{19+4*s}], v12 offset:{s*64}")
e("s_mov_b64 exec, s[64:65]")
e("s_waitcnt lgkmcnt(0)")
c_compute(0)
e("s_branch C_mid")
lab("C_loop")
c_load(0)
c_compute(0)
c_load(1)
lab("C_mid")
c_compute(1)
e("s_branch C_loop")
lab("C_done")
stamp(3)
cross_rows("add", [141], [145])
e(f"s_mul_i32 s33, s28, 2304")
e(f"s_add_u32 s33, s33, {L_CMB}")
e("v_lshlrev_b32 v144, 9, v2")
e("v_lshl_add_u32 v144, v3, 4, v144")
e("v_add_u32 v144, s33, v144")
e("v_lshlrev_b32 v145, 3, v2")
e("v_add_u32 v145, s33, v145")
e("v_cmp_gt_u32 vcc, 4, v2")
e("s_and_saveexec_b64 s[64:65], vcc")
for db in range(8):
    e(f"ds_write_b128 v144, v[{96+4*db}:{99+4*db}] offset:{db*64}")
e("ds_write_b64 v145, v[140:141] offset:2048")
e("s_mov_b64 exec, s[64:65]")
e("s_waitcnt lgkmcnt(0)")
e("s_barrier")
e("s_lshl_b32 s33, s28, 9")
e(f"s_add_u32 s33, s33, {L_CMB}")
e("v_lshlrev_b32 v144, 3, v1")
e("v_add_u32 v146, s33, v144")
e("s_lshl_b32 s33, s28, 3")
e(f"s_add_u32 s33, s33, {L_CMB + 2048}")
e("v_mov_b32 v145, s33")
for w in range(4):
    e(f"ds_read_b64 v[{32+2*w}:{33+2*w}], v146 offset:{w*2304}")
    e(f"ds_read_b64 v[{40+2*w}:{41+2*w}], v145 offset:{w*2304}")
e("s_waitcnt lgkmcnt(0)")
e("v_max3_f32 v48, v40, v42, v44")
e("v_max_f32 v48, v48, v46")
for w in range(4):
    e(f"v_sub_f32 v{50+w}, v{40+2*w}, v48")
    e(f"v_mul_f32 v{50+w}, s60, v{50+w}")
    e(f"v_exp_f32 v{50+w}, v{50+w}")
e("s_nop 0")
e("v_mul_f32 v49, v41, v50")
e("v_mul_f32 v54, v32, v50")
e("v_mul_f32 v55, v33, v50")
for w in range(1, 4):
    e(f"v_fmac_f32 v49, v{41+2*w}, v{50+w}")
    e(f"v_fmac_f32 v54, v{32+2*w}, v{50+w}")
    e(f"v_fmac_f32 v55, v{33+2*w}, v{50+w}")
e("s_lshl_b32 s33, s28, 9")
e("s_add_u32 s33, s33, s34")
e(f"buffer_store_dwordx2 v[54:55], v144, s[36:39], s33 offen offset:{R_O} sc1")
e("s_lshl_b32 s33, s28, 3")
e("s_add_u32 s33, s33, s34")
e("v_cmp_eq_u32 vcc, 0, v1")
e("s_and_saveexec_b64 s[64:65], vcc")
e(f"buffer_store_dwordx2 v[48:49], v144, s[36:39], s33 offen offset:{R_ML} sc1")
e("s_mov_b64 exec, s[64:65]")
stamp(4)
e("s_and_b32 s62, s2, 3")
e("s_lshr_b32 s63, s28, 1")
e("s_lshl_b32 s63, s63, 3")
e("s_bfe_u32 s33, s2, 0x30002")
e("s_add_u32 s63, s63, s33")
e(f"s_lshl_b32 s63, s63, {RSH+GSH}")
e("s_lshl_b32 s69, s62, 9")
e("s_add_u32 s69, s69, s63")
e("s_lshl_b32 s70, s62, 3")
e("s_add_u32 s70, s70, s63")
e("v_and_b32 v4, 127, v0")
e("v_lshlrev_b32 v4, 2, v4")
e(f"v_lshlrev_b32 v5, {RSH+MSH}, v2")
for sp in range(1, 16):
    e(f"v_add_u32 v{200+sp}, {sp << (RSH+MSH)}, v4")
def t1_issue():
    e(f"buffer_load_dwordx2 v[6:7], v5, s[36:39], s70 offen offset:{R_ML} sc1")
    for sp in range(16):
        e(f"buffer_load_dword v{8+sp}, v{4 if sp == 0 else 200+sp}, s[36:39], s69 offen offset:{R_O} sc1")
poll_loads(t1_issue, [6, 7] + list(range(8, 24)), 28, 66)
stamp(5)
e("v_mov_b32 v28, v6")
dpp_steps("max", [28], ROWCTR)
e("v_sub_f32 v29, v6, v28")
e("v_mul_f32 v29, s60, v29")
e("v_exp_f32 v29, v29")
e("s_nop 0")
e("v_mul_f32 v30, v29, v7")
dpp_steps("add", [30], ROWCTR)
e("v_rcp_f32 v31, v30")
e("s_nop 1")
for sp in range(16):
    e(f"v_readlane_b32 s{66+sp}, v29, {sp}")
e("s_nop 1")
e("v_mul_f32 v27, s66, v8")
for sp in range(1, 16):
    e(f"v_fmac_f32 v27, s{66+sp}, v{8+sp}")
e("v_mul_f32 v8, v27, v31")
e("v_fma_f32 v9, -v8, v30, v27")
e("v_fmac_f32 v8, v9, v31")
e("v_cvt_pk_bf16_f32 v8, v8, v8")
e("v_and_b32 v8, 0xffff, v8")
e("v_lshlrev_b32 v9, 2, v0")
e(f"v_add_u32 v9, {L_OL}, v9")
e("ds_write_b32 v9, v8")
e("s_waitcnt lgkmcnt(0)")
e("s_barrier")
e("s_barrier")
e("s_and_b32 s33, s2, 31")
e("s_cmp_lg_u32 s33, 28")
e("s_cbranch_scc1 DONE")
e("s_cmp_ge_u32 s28, 2")
e("s_cbranch_scc1 DONE")
e("v_lshlrev_b32 v4, 2, v0")
e(f"s_lshl_b32 s33, s35, {RSH+5}")
for hh in range(1, 32):
    e(f"v_add_u32 v{200+hh}, {hh << RSH}, v4")
e("s_lshl_b32 s62, s35, 7")
e("v_lshlrev_b32 v5, 1, v1")
e("s_lshl_b32 s63, s28, 10")
e("s_add_u32 s62, s62, s63")
e("buffer_load_ushort v6, v5, s[44:47], s62 offen")
e(f"v_add_u32 v7, {L_G}, v4")
e("ds_read_b32 v100, v7")
def t2_issue():
    for hh in range(32):
        e(f"buffer_load_dword v{64+hh}, v{4 if hh == 0 else 200+hh}, s[36:39], s33 offen offset:{R_S} sc1")
poll_loads(t2_issue, list(range(64, 96)), 28, 66)
for st in (16, 8, 4, 2, 1):
    for k in range(st):
        e(f"v_add_f32 v{64+k}, v{64+k}, v{64+k+st}")
e("s_waitcnt lgkmcnt(0)")
e("v_cvt_pk_bf16_f32 v64, v64, v64")
e("v_lshlrev_b32 v64, 16, v64")
e("v_mul_f32 v67, v64, v100")
e("v_cvt_pk_bf16_f32 v67, v67, v67")
e("v_lshlrev_b32 v67, 16, v67")
e("v_lshlrev_b32 v6, 16, v6")
e("v_add_f32 v67, v6, v67")
e("v_cvt_pk_bf16_f32 v67, v67, v67")
srd(48, 22, 23, 2048)
e("buffer_store_short v67, v5, s[48:51], s62 offen")
stamp(6)
e("s_branch DONE")

lab("ROLE_HI")
srd(48, 12, 13, 4096*512*2)
e("v_subrev_u32 v4, 256, v0")
e("v_lshrrev_b32 v5, 3, v4")
e("v_and_b32 v6, 7, v4")
e("v_lshlrev_b32 v7, 12, v5")
e("v_lshl_add_u32 v7, v6, 4, v7")
e("s_and_b32 s62, s2, 31")
e("s_lshl_b32 s62, s62, 17")
e("s_lshl_b32 s63, s35, 7")
e("s_add_u32 s62, s62, s63")
e(f"v_mov_b32 v24, {LB}")
e("s_cmp_lg_u32 s28, 4")
e("s_cbranch_scc1 ROLE_H")
def wo_loads():
    for i in range(4):
        if ABL >= 1:
            e(f"buffer_load_dwordx4 v[{32+4*i}:{35+4*i}], v7, s[44:47], 0 offen offset:4000")
            continue
        e(f"buffer_load_dwordx4 v[{32+4*i}:{35+4*i}], v7, s[48:51], s62 offen offset:{i*1024} nt")
if PRIO: e("s_setprio 3")
e("s_lshl_b32 s64, s29, 23")
e("s_lshl_b32 s75, s30, 19")
e("s_add_u32 s52, s6, s64"); e("s_addc_u32 s53, s7, 0"); e("s_mov_b32 s54, 0x800000"); e("s_mov_b32 s55, 0x00020000")
e("s_add_u32 s56, s8, s64"); e("s_addc_u32 s57, s9, 0"); e("s_mov_b32 s58, 0x800000"); e("s_mov_b32 s59, 0x00020000")
e("v_lshlrev_b32 v8, 1, v3")
e("v_xor_b32 v8, v2, v8")
e("v_lshlrev_b32 v8, 4, v8")
e("v_lshl_add_u32 v8, v3, 8, v8")
e("v_xor_b32 v9, 0x80, v8")
e(f"s_mul_i32 s66, s2, {ROTM}")
e("s_and_b32 s66, s66, 63")
e("s_lshl_b32 s76, s66, 13")
e("s_add_u32 s66, s76, s75")
e("s_mov_b32 s67, 0")
def dma(srdb):
    for half in range(2):
        if half:
            e("s_add_u32 m0, s67, 4096")
            e("s_add_u32 s68, s66, 4096")
        else:
            e("s_mov_b32 m0, s67")
            e("s_nop 0")
        so = 68 if half else 66
        for n in range(4):
            e(f"buffer_load_dwordx4 v{9 if (n & 1) else 8}, s[{srdb}:{srdb+3}], s{so} offen offset:{n*1024} nt lds")
    e("s_add_u32 s67, s67, 8192")
    e("s_and_b32 s67, s67, 0x1ffff")
def adv():
    e("s_add_u32 s76, s76, 8192")
    e("s_and_b32 s76, s76, 0x7ffff")
    e("s_add_u32 s66, s76, s75")
assert D % 2 == 0
for n in range(D0):
    dma(52 if n % 2 == 0 else 56)
    if n % 2: adv()
e("v_lshlrev_b32 v15, 2, v1")
e(f"v_add_u32 v15, {LB}, v15")
e("v_mov_b32 v16, 0")
e("ds_write_b32 v15, v16")
e("s_waitcnt lgkmcnt(0)")
e("s_barrier")
e(f"s_mov_b32 s69, {D0 - D}")
e(f"s_mov_b32 s70, {D0//2}")
lab("L_loop")
for kv in range(2):
    e(f"s_waitcnt vmcnt({(D-1)*8})")
    e("s_add_u32 s69, s69, 1")
    e("v_mov_b32 v16, s69")
    e(f"ds_write_b32 v24, v16 offset:{F_LANDED-LB}")
    if kv == 0 and not PURE:
        sk = uid("LF")
        e("s_cmp_lt_u32 s70, 8")
        e(f"s_cbranch_scc1 {sk}")
        e("s_and_b32 s71, s70, 3")
        e("s_lshl_b32 s71, s71, 2")
        e(f"s_add_u32 s71, s71, {F_CONS}")
        e("v_mov_b32 v17, s71")
        e("s_lshr_b32 s72, s70, 2")
        e("s_sub_u32 s72, s72, 1")
        lds_wait_ge(17, 0, "s72", 18, 73, sleep=1)
        lab(sk)
    dma(52 if kv == 0 else 56)
adv()
e("s_add_u32 s70, s70, 1")
if STAMP:
    for si, cnt in ((1, 8), (2, 16), (4, 32), (5, 64), (6, 96)):
        sk = uid("LS")
        e(f"s_cmp_lg_u32 s69, {cnt}")
        e(f"s_cbranch_scc1 {sk}")
        stamp(si)
        lab(sk)
e(f"s_cmp_lt_u32 s70, {64 if PURE else SST}")
e("s_cbranch_scc1 L_loop")
if not PURE:
    e(f"s_sub_u32 s77, s70, {SST - 1}")
    lds_wait_ge(24, F_TQN-LB, "s77", 18, 73, sleep=1)
    e("s_lshl_b32 s71, s77, 2")
    e(f"s_add_u32 s71, s71, {L_TQ - 4}")
    e("v_mov_b32 v17, s71")
    e("ds_read_b32 v18, v17")
    e("v_mov_b32 v16, s77")
    e(f"ds_write_b32 v24, v16 offset:{F_LIDX-LB}")
    e("s_waitcnt lgkmcnt(0)")
    e("v_readfirstlane_b32 s71, v18")
    e("s_nop 0")
    e(f"s_cmp_ge_u32 s71, {POOL}")
    e("s_cbranch_scc1 L_done")
    e("s_and_b32 s72, s71, 15")
    e("s_lshr_b32 s71, s71, 4")
    e(f"s_lshl_b32 s73, s29, {GSH}")
    e(f"s_lshl_b32 s74, s72, {MSH}")
    e("s_add_u32 s73, s73, s74")
    e(f"s_mul_i32 s73, s73, {ROTM}")
    e("s_add_u32 s73, s73, s71")
    e(f"s_add_u32 s73, s73, {SST}")
    e("s_and_b32 s73, s73, 63")
    e("s_lshl_b32 s73, s73, 13")
    e("s_lshl_b32 s72, s72, 19")
    e("s_add_u32 s66, s72, s73")
    e("s_branch L_loop")
    lab("L_done")
    e("s_lshl_b32 s71, s70, 1")
    e("v_mov_b32 v16, s71")
    e(f"ds_write_b32 v24, v16 offset:{F_TOTAL-LB}")
wo_loads()
for j in range(D):
    e(f"s_waitcnt vmcnt({(D-1-j)*8 + 4})")
    e("s_add_u32 s69, s69, 1")
    e("v_mov_b32 v16, s69")
    e(f"ds_write_b32 v24, v16 offset:{F_LANDED-LB}")
e("s_waitcnt lgkmcnt(0)")
stamp(3)
e("s_branch DONE" if PURE else "s_branch HI_TAIL2")

lab("ROLE_H")
if PURE: e("s_branch DONE")
e("s_cmp_lg_u32 s28, 5")
e("s_cbranch_scc1 ROLE_H67")
e("v_lshlrev_b32 v10, 4, v1")
e("s_lshl_b32 s71, s2, 10")
e(f"s_add_u32 s71, s71, {WS_QI}")
e("v_mov_b32 v16, -1"); e("v_mov_b32 v17, -1"); e("v_mov_b32 v18, -1"); e("v_mov_b32 v19, -1")
e("buffer_store_dwordx4 v[16:19], v10, s[36:39], s71 offen sc1")
e("s_barrier")
e("v_and_b32 v13, 3, v1")
e("v_lshlrev_b32 v13, 4, v13")
e("v_lshrrev_b32 v11, 2, v1")
e(f"v_lshlrev_b32 v11, {10+MSH}, v11")
e("v_add_u32 v11, v11, v13")
e(f"s_lshl_b32 s72, s29, {10+GSH}")
e("s_lshl_b32 s73, s30, 6")
e("s_add_u32 s72, s72, s73")
e(f"s_add_u32 s72, s72, {WS_QI}")
e("v_mov_b32 v15, 1")
lds_wait_ge(24, F_QCNT-LB, 4, 16, 33, sleep=0)
e("v_lshlrev_b32 v12, 3, v2")
e(f"v_add_u32 v12, {L_QP}, v12")
for w in range(4):
    e(f"ds_read_b64 v[{16+2*w}:{17+2*w}], v12 offset:{w*128}")
e("s_waitcnt lgkmcnt(0)")
e("v_add_f32 v16, v16, v18"); e("v_add_f32 v17, v17, v19")
e("v_add_f32 v20, v20, v22"); e("v_add_f32 v21, v21, v23")
e("v_add_f32 v16, v16, v20"); e("v_add_f32 v17, v17, v21")
e("v_cvt_pk_bf16_f32 v16, v16, v17")
e("v_lshlrev_b32 v12, 2, v2")
e(f"v_add_u32 v12, {L_Q}, v12")
e("ds_write_b32 v12, v16")
e(f"v_add_u32 v12, {L_Q}, v13")
e("s_waitcnt lgkmcnt(0)")
e("ds_read_b128 v[20:23], v12")
e("s_waitcnt vmcnt(0) lgkmcnt(0)")
e("buffer_store_dwordx4 v[20:23], v11, s[36:39], s72 offen sc1")
stamp(4)
poll_loads(lambda: e("buffer_load_dwordx4 v[16:19], v10, s[36:39], s71 offen sc1"), [16,17,18,19], 26, 66)
e(f"v_add_u32 v13, {L_Q}, v10")
e("ds_write_b128 v13, v[16:19]")
e("s_waitcnt lgkmcnt(0)")
e(f"ds_write_b32 v24, v15 offset:{F_QRDY-LB}")
e("buffer_store_dwordx4 v[20:23], v11, s[36:39], s72 offen sc1")
e("s_waitcnt lgkmcnt(0)")
srd(40, 24, 25, 256)
e("v_mov_b32 v8, -1"); e("v_mov_b32 v9, -1"); e("v_mov_b32 v10, -1"); e("v_mov_b32 v11, -1")
e("v_lshlrev_b32 v12, 4, v1")
e("s_add_u32 s33, s34, 4096")
for i in range(4):
    e(f"buffer_store_dwordx4 v[8:11], v12, s[36:39], s34 offen offset:{i*1024} sc1")
e("buffer_store_dwordx4 v[8:11], v12, s[36:39], s33 offen sc1")
e("s_lshl_b32 s78, s29, 8")
e(f"s_add_u32 s78, s78, {WS_TK}")
e("v_mov_b32 v27, 0")
e("s_cmp_lg_u32 s30, 0")
e("s_cbranch_scc1 H5_notlead")
e("buffer_store_dword v27, v27, s[36:39], s78 offen sc1")
lab("H5_notlead")
e("s_and_b32 s83, s29, 3")
e("s_lshl_b32 s83, s83, 6")
e("s_and_b32 s33, s29, 12")
e("s_add_u32 s83, s83, s33")
e("v_mov_b32 v13, s83")
e("v_mov_b32 v14, 1")
e("s_waitcnt vmcnt(0)")
e("v_cmp_eq_u32 vcc, 0, v1")
e("s_and_saveexec_b64 s[64:65], vcc")
e("buffer_atomic_add v14, v13, s[40:43], 0 offen")
e("s_mov_b64 exec, s[64:65]")
stamp(1)
lds_wait_ge(24, F_LANDED-LB, 32, 25, 33, sleep=8)
wait_all_counters(25, 26, 66)
e("v_mov_b32 v25, 1")
e(f"ds_write_b32 v24, v25 offset:{F_ALLC-LB}")
e("s_waitcnt lgkmcnt(0)")
stamp(2)
lds_wait_ge(24, F_LANDED-LB, 2*(SST-8), 25, 33, sleep=8)
AH = int(os.environ.get("AH", "2"))
e("s_mov_b32 s79, 0")
e("s_mov_b32 s80, 0")
e("s_mov_b32 s77, 0")
e("s_mov_b64 s[64:65], exec")
e("s_mov_b64 exec, 1")
lab("A_loop")
e(f"ds_read_b32 v25, v24 offset:{F_LIDX-LB}")
e("s_waitcnt lgkmcnt(0)")
e("v_readfirstlane_b32 s81, v25")
e("s_nop 0")
e(f"s_add_u32 s33, s81, {AH}")
e("s_min_u32 s33, s33, 46")
e("s_cmp_ge_u32 s79, s33")
e("s_cbranch_scc1 A_pub")
e("s_and_b32 s33, s79, 3")
e("s_lshl_b64 exec, 1, s33")
e("v_mov_b32 v29, 1")
e("buffer_atomic_add v29, v27, s[36:39], s78 offen sc0")
e("s_mov_b64 exec, 1")
e("s_add_u32 s79, s79, 1")
e("s_branch A_loop")
lab("A_pub")
e("s_cmp_ge_u32 s80, s79")
e("s_cbranch_scc1 A_idle")
e("s_sub_u32 s33, s79, s80")
e("s_cmp_ge_u32 s33, 3")
e("s_cbranch_scc1 A_w2")
e("s_cmp_ge_u32 s33, 2")
e("s_cbranch_scc1 A_w1")
e("s_waitcnt vmcnt(0)")
lab("A_w1")
e("s_waitcnt vmcnt(1)")
lab("A_w2")
e("s_waitcnt vmcnt(2)")
e("s_and_b32 s33, s80, 3")
e("v_readlane_b32 s76, v29, s33")
e("s_lshl_b32 s33, s80, 2")
e(f"s_add_u32 s33, s33, {L_TQ}")
e("v_mov_b32 v30, s33")
e("v_mov_b32 v31, s76")
e("ds_write_b32 v30, v31")
e("s_add_u32 s80, s80, 1")
e("v_mov_b32 v31, s80")
e("s_waitcnt lgkmcnt(0)")
e(f"ds_write_b32 v24, v31 offset:{F_TQN-LB}")
e(f"s_cmp_ge_u32 s76, {POOL}")
e("s_cbranch_scc1 A_done")
e("s_branch A_loop")
lab("A_idle")
e("s_cmp_ge_u32 s80, 46")
e("s_cbranch_scc1 A_full")
e("s_sleep 1")
e("s_add_u32 s77, s77, 1")
e("s_cmp_lt_u32 s77, 0x800000")
e("s_cbranch_scc1 A_loop")
lab("A_full")
e("s_lshl_b32 s33, s80, 2")
e(f"s_add_u32 s33, s33, {L_TQ}")
e("v_mov_b32 v30, s33")
e("v_mov_b32 v31, -1")
e("ds_write_b32 v30, v31")
e("s_add_u32 s80, s80, 1")
e("v_mov_b32 v31, s80")
e("s_waitcnt lgkmcnt(0)")
e(f"ds_write_b32 v24, v31 offset:{F_TQN-LB}")
lab("A_done")
e("s_waitcnt lgkmcnt(0)")
e("s_mov_b64 exec, s[64:65]")
stamp(3)
e("s_branch HI_TAIL")

lab("ROLE_H67")
e("s_barrier")
if ABL >= 1: e("s_branch HI_TAIL")
lds_wait_ge(24, F_QRDY-LB, 1, 25, 33, sleep=4)
e("v_lshrrev_b32 v8, 3, v1")
e("v_and_b32 v9, 7, v1")
e("s_sub_u32 s74, s28, 6")
e("s_cmp_ge_u32 s2, 224")
e("s_cbranch_scc1 H67_noffn1")
e("s_cmp_eq_u32 s28, 6")
e("s_cselect_b32 s52, s16, s18")
e("s_cselect_b32 s53, s17, s19")
e(f"s_mov_b32 s54, {512*1792*2}")
e("s_mov_b32 s55, 0x00020000")
e("v_lshlrev_b32 v12, 4, v1")
e("buffer_load_dwordx4 v[16:19], v12, s[44:47], 0 offen")
e("buffer_load_dwordx4 v[20:23], v12, s[44:47], 0 offen offset:1024")
e("v_mul_u32_u24 v10, 28672, v8")
e("v_lshl_add_u32 v10, v9, 4, v10")
e("s_lshr_b32 s64, s2, 3")
e("s_lshl_b32 s64, s64, 7")
e("s_and_b32 s81, s2, 7")
e("s_mul_i32 s65, s81, 229376")
e("s_add_u32 s66, s64, s65")
for i in range(8):
    if i: e("s_add_u32 s66, s66, 3584")
    e(f"buffer_load_dwordx4 v[{64+4*i}:{67+4*i}], v10, s[52:55], s66 offen nt")
e("s_waitcnt vmcnt(8)")
layernorm(2, 16, 128, 144)
e("s_lshl_b32 s64, s81, 3")
e("v_add_u32 v12, s64, v8")
e("v_lshlrev_b32 v12, 2, v12")
for i in range(16):
    e(f"ds_bpermute_b32 v{160+i}, v12, v{128+i}")
    if i == 7: e("s_waitcnt lgkmcnt(4)")
for i in range(16):
    e(f"v_mov_b32 v{96+i}, 0")
e("s_waitcnt lgkmcnt(0)")
for i in range(16):
    e(f"v_lshlrev_b32 v{176+i}, 16, v{160+i}")
e("s_waitcnt vmcnt(0)")
for i in range(8):
    for j in range(4):
        w = 64 + 4*i + j
        for b in range(2):
            a = 96 + 8*b + 2*j
            e(f"v_dot2_f32_bf16 v{a}, v{w}, v{160+8*b+i}, v{a}")
            e(f"v_dot2_f32_bf16 v{a+1}, v{w}, v{176+8*b+i}, v{a+1}")
red16(96)
red16_addr(11, 12, 9)
lds_wait_ge(24, F_ALLC-LB, 1, 25, 33, sleep=8)
e("s_lshl_b32 s66, s74, 9")
e("s_add_u32 s66, s66, s34")
e(f"s_add_u32 s66, s66, {R_P}")
e("v_and_b32 v12, 8, v1")
e("v_cmp_eq_u32 vcc, 0, v12")
e("s_and_saveexec_b64 s[64:65], vcc")
e("buffer_store_dwordx4 v[96:99], v11, s[36:39], s66 offen sc1")
e("s_mov_b64 exec, s[64:65]")
stamp(1)
lab("H67_noffn1")
e("s_and_b32 s64, s2, 31")
e("s_cmp_ge_u32 s64, 28")
e("s_cbranch_scc1 H6_fred")
srd(52, 20, 21, 1792*512*2)
e("v_lshlrev_b32 v10, 12, v8")
e("v_lshl_add_u32 v10, v9, 4, v10")
e("s_lshl_b32 s66, s64, 16")
e("s_lshl_b32 s67, s74, 15")
e("s_add_u32 s66, s66, s67")
e("s_add_u32 s66, s66, s63")
for i in range(4):
    e(f"buffer_load_dwordx4 v[{48+4*i}:{51+4*i}], v10, s[52:55], s66 offen offset:{i*1024} nt")
lds_wait_ge(24, F_ALLC-LB, 1, 25, 33, sleep=8)
lds_wait_ge(24, F_LANDED-LB, PGATE, 25, 33, sleep=8)
e("v_lshlrev_b32 v11, 4, v8")
e(f"s_lshl_b32 s66, s64, {RSH+3}")
e("s_lshl_b32 s67, s74, 7")
e("s_add_u32 s66, s66, s67")
e(f"s_add_u32 s66, s66, {R_P}")
for rb in range(1, 8):
    e(f"v_add_u32 v{200+rb}, {rb << RSH}, v11")
def p_issue():
    for rb in range(8):
        for mb in range(4):
            r = 64 + (rb*4+mb)*4
            e(f"buffer_load_dwordx4 v[{r}:{r+3}], v{11 if rb == 0 else 200+rb}, s[36:39], s66 offen offset:{mb*256} sc1")
poll_loads(p_issue, list(range(64, 192)), 28, 68, sleep=48)
for rb in range(1, 8):
    for k in range(16):
        e(f"v_add_f32 v{64+k}, v{64+k}, v{64+rb*16+k}")
for k in range(8):
    round_pair(64+k, 72+k, 96)
    silu(97, 64+k, 98, 99)
    e("v_cvt_pk_bf16_f32 v96, v97, v97")
    e("v_lshlrev_b32 v97, 16, v96")
    e(f"v_mul_f32 v97, v97, v{72+k}")
    e("v_cvt_pk_bf16_f32 v96, v97, v97")
    e(f"v_and_b32 v{80+2*k}, 0xffff, v96")
    e(f"v_lshlrev_b32 v{81+2*k}, 16, v96")
for i in range(16):
    e(f"v_mov_b32 v{96+i}, 0")
for i in range(4):
    for j in range(4):
        w = 48 + 4*i + j
        for b in range(2):
            a = 96 + 8*b + 2*j
            e(f"v_dot2_f32_bf16 v{a}, v{w}, v{80+b*8+2*i}, v{a}")
            e(f"v_dot2_f32_bf16 v{a+1}, v{w}, v{81+b*8+2*i}, v{a+1}")
red16(96)
red16_addr(11, 12, 9)
e("s_lshl_b32 s66, s74, 9")
e("s_add_u32 s66, s66, s34")
e("v_and_b32 v12, 8, v1")
e("v_cmp_eq_u32 vcc, 0, v12")
e("s_and_saveexec_b64 s[64:65], vcc")
e(f"buffer_store_dwordx4 v[96:99], v11, s[36:39], s66 offen offset:{R_F} sc1")
e("s_mov_b64 exec, s[64:65]")
stamp(3)
e("s_branch HI_TAIL")
lab("H6_fred")
e("s_cmp_lg_u32 s64, 28")
e("s_cbranch_scc1 HI_TAIL")
e("s_cmp_lg_u32 s28, 6")
e("s_cbranch_scc1 HI_TAIL")
lds_wait_ge(24, F_ALLC-LB, 1, 25, 33, sleep=8)
lds_wait_ge(24, F_LANDED-LB, FGATE, 25, 33, sleep=8)
e("v_lshlrev_b32 v13, 3, v1")
e(f"s_lshl_b32 s33, s35, {RSH+5}")
for hh in range(1, 28):
    e(f"v_add_u32 v{200+hh}, {hh << RSH}, v13")
def fr_issue():
    for hh in range(28):
        for pt in range(2):
            r = 64 + (hh*2+pt)*2
            e(f"buffer_load_dwordx2 v[{r}:{r+1}], v{13 if hh == 0 else 200+hh}, s[36:39], s33 offen offset:{R_F + pt*512} sc1")
poll_loads(fr_issue, list(range(64, 176)), 28, 66, sleep=64)
for k in range(1, 56):
    e(f"v_add_f32 v64, v64, v{64+2*k}")
    e(f"v_add_f32 v65, v65, v{65+2*k}")
round_pair(64, 65, 66)
silu(68, 64, 70, 71)
silu(69, 65, 70, 71)
round_pair(68, 69, 66)
e(f"v_add_u32 v13, {L_G}, v13")
e("ds_write_b64 v13, v[68:69]")
e("s_waitcnt lgkmcnt(0)")
stamp(3)
e("s_branch HI_TAIL")


lab("HI_TAIL")
e("s_waitcnt vmcnt(0)")
lds_wait_ge(24, F_TOTAL-LB, 1, 25, 33, sleep=2)
wo_loads()
lab("HI_TAIL2")
e("v_lshlrev_b32 v8, 4, v5")
e(f"v_add_u32 v8, {L_OL}, v8")
for i in range(16):
    e(f"v_mov_b32 v{96+i}, 0")
red16_addr(11, 12, 6)
e("s_sub_u32 s33, s28, 4")
e("s_lshl_b32 s33, s33, 9")
e(f"s_add_u32 s33, s33, {L_RED}")
e("v_add_u32 v11, s33, v11")
e("s_barrier")
e("s_barrier")
e("ds_read_b128 v[16:19], v8")
e("ds_read_b128 v[20:23], v8 offset:512")
e("s_waitcnt vmcnt(0) lgkmcnt(0)")
for i in range(8):
    e(f"v_lshlrev_b32 v{24+i}, 16, v{16+i}")
for i in range(4):
    for j in range(4):
        w = 32 + 4*i + j
        for b in range(2):
            a = 96 + 8*b + 2*j
            e(f"v_dot2_f32_bf16 v{a}, v{w}, v{16+b*4+i}, v{a}")
            e(f"v_dot2_f32_bf16 v{a+1}, v{w}, v{24+b*4+i}, v{a+1}")
red16(96)
e("v_and_b32 v12, 8, v1")
e("v_cmp_eq_u32 vcc, 0, v12")
e("s_and_saveexec_b64 s[64:65], vcc")
e("ds_write_b128 v11, v[96:99]")
e("s_mov_b64 exec, s[64:65]")
e("s_waitcnt lgkmcnt(0)")
e("s_barrier")
e("s_cmp_ge_u32 s28, 6")
e("s_cbranch_scc1 DONE")
e("v_lshlrev_b32 v12, 2, v4")
e(f"v_add_u32 v13, {L_RED}, v12")
for w in range(4):
    e(f"ds_read_b32 v{16+w}, v13 offset:{w*512}")
e("s_waitcnt lgkmcnt(0)")
e("v_add_f32 v16, v16, v17")
e("v_add_f32 v18, v18, v19")
e("v_add_f32 v16, v16, v18")
e(f"buffer_store_dword v16, v12, s[36:39], s34 offen offset:{R_S} sc1")
lab("DONE")
if STAMP:
    e("s_mov_b64 exec, -1")
    e("s_cmp_ge_u32 s2, 256")
    e("s_cbranch_scc1 DONE2")
    stamp(7)
    e("s_waitcnt lgkmcnt(0) vmcnt(0)")
    for i in range(8):
        e(f"v_mov_b32 v{8+i}, s{84+2*i}")
    e("s_lshl_b32 s33, s2, 8")
    e("s_lshl_b32 s34, s28, 5")
    e("s_add_u32 s33, s33, s34")
    e(f"s_add_u32 s33, s33, {STAMP_OFF}")
    e("v_mov_b32 v4, s33")
    e("v_and_b32 v5, 63, v0")
    e("v_cmp_eq_u32 vcc, 0, v5")
    e("s_and_saveexec_b64 s[64:65], vcc")
    e("buffer_store_dwordx4 v[8:11], v4, s[36:39], 0 offen")
    e("buffer_store_dwordx4 v[12:15], v4, s[36:39], 0 offen offset:16")
    if STAMP == 2:
        srd(40, 24, 25, 256)
        e("v_mov_b32 v20, 16"); e("buffer_atomic_umax v15, v20, s[40:43], 0 offen")
        e("v_not_b32 v21, v8"); e("v_mov_b32 v20, 20"); e("buffer_atomic_umax v21, v20, s[40:43], 0 offen")
        e("s_cmp_lg_u32 s28, 4"); e("s_cbranch_scc1 DG1")
        e("v_mov_b32 v20, 24"); e("buffer_atomic_umax v11, v20, s[40:43], 0 offen")
        e("v_mov_b32 v20, 32"); e("buffer_atomic_umax v10, v20, s[40:43], 0 offen")
        e("v_not_b32 v21, v11"); e("v_mov_b32 v20, 36"); e("buffer_atomic_umax v21, v20, s[40:43], 0 offen")
        e("v_mov_b32 v20, 40"); e("buffer_atomic_umax v13, v20, s[40:43], 0 offen")
        lab("DG1")
        e("s_cmp_lg_u32 s28, 0"); e("s_cbranch_scc1 DG2")
        e("v_mov_b32 v20, 28"); e("buffer_atomic_umax v10, v20, s[40:43], 0 offen")
        e("v_mov_b32 v20, 44"); e("buffer_atomic_umax v8, v20, s[40:43], 0 offen")
        lab("DG2")
    lab("DONE2")
e("s_endpgm")
raw('.section .rodata,"a"')
raw(".p2align 6")
raw(f".amdhsa_kernel {KNAME}")
raw("  .amdhsa_next_free_vgpr 248")
raw("  .amdhsa_next_free_sgpr 100")
raw("  .amdhsa_accum_offset 248")
raw("  .amdhsa_group_segment_fixed_size 0")
raw("  .amdhsa_kernarg_size 96")
raw("  .amdhsa_user_sgpr_count 2")
raw("  .amdhsa_user_sgpr_kernarg_segment_ptr 1")
raw("  .amdhsa_system_sgpr_workgroup_id_x 1")
raw("  .amdhsa_float_denorm_mode_32 3")
raw(".end_amdhsa_kernel")
hdr = open(f"cdna_kernels/{NAME}.s.ref").read().split("\n")
head = [l for l in hdr if l.startswith(";") and "@launch" not in l]
out = head + [f"; @launch grid=(256,1,1) block=(512,1,1) lds={LDS_TOTAL}",
              '.amdgcn_target "amdgcn-amd-amdhsa--gfx950"', ".text"]
dst = sys.argv[1] if len(sys.argv) > 1 else f"cdna_kernels/{NAME}.s"
open(dst, "w").write("\n".join(out + L) + "\n")
print("wrote", dst, len(L), "lines; LDS", LDS_TOTAL)
```
